```python
import torch

def _softmax(x, axis=-1):
    return torch.softmax(x, dim=axis)
def _gelu(x):
    return torch.nn.functional.gelu(x, approximate="tanh")
def _silu(x):
    return torch.nn.functional.silu(x)
def _sigmoid(x):
    return torch.sigmoid(x)
def _layernorm(x, axis=-1, eps=1e-5):
    m = x.mean(dim=axis, keepdim=True)
    v = x.var(dim=axis, keepdim=True, unbiased=False)
    return (x - m) / torch.sqrt(v + eps)
def _scatter_add(tgt, idx, src, axis=0):
    return tgt.clone().index_add_(axis, idx, src)
def _segment_sum(src, seg, n):
    out = torch.zeros((n,) + src.shape[1:], dtype=src.dtype)
    return out.index_add_(0, seg, src)
def _pad(x, pw):
    flat = tuple(v for pair in reversed(pw) for v in pair)
    return torch.nn.functional.pad(x, flat)

kernel_name = 'concat_heads__mha_block_cached__gqa_block_cached__decode'

def setup_inputs():

    _w = (lambda a: (lambda t: t.to(torch.bfloat16) if t.is_floating_point() else t)(torch.as_tensor(a)))
    def _A_setup():
        B, Sq, D = 4, 1, 640
        H, Sk, Dh = 32, 4096, 128
        return {
            "x": _w((lambda *s: torch.randn(*s, dtype=torch.bfloat16) * 0.8)(B, Sq, D)),
            "k_cache": _w((lambda *s: torch.randn(*s, dtype=torch.bfloat16) * 0.8)(B, H, Sk, Dh)),
            "v_cache": _w((lambda *s: torch.randn(*s, dtype=torch.bfloat16) * 0.05)(B, H, Sk, Dh)),
            "wq": _w((lambda *s: torch.randn(*s, dtype=torch.bfloat16) * 0.8)(D, H * Dh) * (D ** -0.5)),
            "wo": _w((lambda *s: torch.randn(*s, dtype=torch.bfloat16) * 0.05)(H * Dh, D) * ((H * Dh) ** -0.5)),
        }
    _A_in = _A_setup()

    def _B_setup():
        B, Sq, D = 4, 1, 640
        Hq, Hkv, Sk, Dh = 32, 32, 4096, 128
        assert Hq % Hkv == 0, (Hq, Hkv)
        return {
            "x": _w((lambda *s: torch.randn(*s, dtype=torch.bfloat16) * 0.8)(B, Sq, D)),
            "k_cache": _w((lambda *s: torch.randn(*s, dtype=torch.bfloat16) * 0.8)(B, Hkv, Sk, Dh)),
            "v_cache": _w((lambda *s: torch.randn(*s, dtype=torch.bfloat16) * 0.05)(B, Hkv, Sk, Dh)),
            "wq": _w((lambda *s: torch.randn(*s, dtype=torch.bfloat16) * 0.8)(D, Hq * Dh) * (D ** -0.5)),
            "wo": _w((lambda *s: torch.randn(*s, dtype=torch.bfloat16) * 0.05)(Hq * Dh, D) * ((Hq * Dh) ** -0.5)),
        }
    _B_in = _B_setup()

    return {
        "A_x": _A_in["x"],
        "A_k_cache": _A_in["k_cache"],
        "A_v_cache": _A_in["v_cache"],
        "A_wq": _A_in["wq"],
        "A_wo": _A_in["wo"],
        "B_x": _B_in["x"],
        "B_k_cache": _B_in["k_cache"],
        "B_v_cache": _B_in["v_cache"],
        "B_wq": _B_in["wq"],
        "B_wo": _B_in["wo"],
    }

def reference(A_x, A_k_cache, A_v_cache, A_wq, A_wo, B_x, B_k_cache, B_v_cache, B_wq, B_wo):
    def _A_ref(x, k_cache, v_cache, wq, wo):
        B, Sq, D = x.shape
        H, Dh = 32, 128
        q = (lambda x, *d: x.permute(*d))((x @ wq).reshape(B, Sq, H, Dh), 0, 2, 1, 3)
        scores = torch.einsum("bhqd,bhkd->bhqk", q, k_cache) * (Dh ** -0.5)
        p = _softmax(scores, axis=-1)
        o = torch.einsum("bhqk,bhkd->bhqd", p, v_cache)
        return (lambda x, *d: x.permute(*d))(o, 0, 2, 1, 3).reshape(B, Sq, H * Dh) @ wo

    def _B_ref(x, k_cache, v_cache, wq, wo):
        B, Sq, D = x.shape
        Hq, Dh = 32, 128
        Hkv = k_cache.shape[1]
        rep = Hq // Hkv
        q = (lambda x, *d: x.permute(*d))((x @ wq).reshape(B, Sq, Hq, Dh), 0, 2, 1, 3)
        k = (lambda x, n, axis: torch.repeat_interleave(x, n, dim=axis))(k_cache, rep, axis=1)
        v = (lambda x, n, axis: torch.repeat_interleave(x, n, dim=axis))(v_cache, rep, axis=1)
        scores = torch.einsum("bhqd,bhkd->bhqk", q, k) * (Dh ** -0.5)
        p = _softmax(scores, axis=-1)
        o = torch.einsum("bhqk,bhkd->bhqd", p, v)
        return (lambda x, *d: x.permute(*d))(o, 0, 2, 1, 3).reshape(B, Sq, Hq * Dh) @ wo

    a = _A_ref(A_x, A_k_cache, A_v_cache, A_wq, A_wo)
    b = _B_ref(B_x, B_k_cache, B_v_cache, B_wq, B_wo)
    return torch.concatenate([a, b], axis=-1)
```

```python
import re
def regs(spec):
    spec = spec.strip()
    if spec.startswith('-'): spec = spec[1:]
    m = re.fullmatch(r'([vsa])(\d+)', spec)
    if m: return [spec]
    m = re.fullmatch(r'([vsa])\[(\d+):(\d+)\]', spec)
    if m: return ['%s%d' % (m.group(1), i) for i in range(int(m.group(2)), int(m.group(3))+1)]
    if spec in ('vcc', 'vcc_lo'): return ['vcc']
    if spec == 'exec': return ['exec']
    if spec == 'm0': return ['m0']
    return []
TRANS = ('v_exp_f32', 'v_log_f32', 'v_rcp_f32', 'v_rsq_f32', 'v_sqrt_f32', 'v_sin_f32', 'v_cos_f32')
class Em:
    def __init__(self):
        self.L = []
        self.pos = 0
        self.lastw = {}
        self.mfmaC = {}
        self.storeR = {}
        self.vm = []
        self.nops = 0
    def raw(self, s):
        self.L.append(s)
    def comment(self, s):
        self.L.append('    ; ' + s)
    def label(self, s, flush=True):
        self.L.append(s + ':')
    def fence(self, n=None):
        need = 0
        for r, (p, k) in self.lastw.items():
            d = {'mfma': 8, 'dot': 3, 'valu': 2, 'trans': 2, 'valu_s': 5}.get(k, 0)
            need = max(need, d - (self.pos - p - 1))
        for r, p in self.mfmaC.items(): need = max(need, 3 - (self.pos - p - 1))
        for r, p in self.storeR.items(): need = max(need, 2 - (self.pos - p - 1))
        self._nop(need)
    def _nop(self, n):
        while n > 0:
            k = min(n, 16)
            self.L.append('    s_nop %d' % (k-1))
            self.pos += k; n -= k; self.nops += 1
    def _dist(self, p):
        return self.pos - p - 1
    def ins(self, text, w=(), r=(), kind='valu', dpp=False, srcC=None):
        W = [x for s in w for x in regs(s)]
        R = [x for s in r for x in regs(s)]
        C = regs(srcC) if srcC else []
        op = text.split()[0]
        need = 0
        isvalu = kind in ('valu', 'trans', 'dot', 'lane', 'perm')
        for x in set(R + W + C):
            if x not in self.lastw: continue
            p, k = self.lastw[x]
            d = 0
            rd = x in R or x in C
            if k == 'mfma':
                if kind == 'mfma':
                    if x in C and x not in R: d = 0 if self.lastw_meta.get(x) == srcC else 6
                    elif x in R: d = 8
                    else: d = 6
                elif kind in ('salu', 'other'): d = 0
                else: d = 8
            elif k == 'dot':
                if kind == 'dot' and self.lastw_meta.get(x) == op and (x in C or (x in W and x not in R)): d = 0
                elif kind in ('salu', 'other'): d = 0
                else: d = 3
            elif k in ('valu', 'trans'):
                if x[0] == 'v' and x != 'vcc' or x[0] == 'a':
                    if rd:
                        if kind == 'mfma': d = 2
                        elif dpp and isvalu: d = 2
                        elif kind == 'perm': d = 2
                        elif kind == 'lane': d = 1
                        if k == 'trans' and kind != 'trans' and (isvalu or kind in ('mfma', 'vmem', 'ds')): d = max(d, 1)
                    elif kind == 'perm': d = 2
            elif k == 'valu_s':
                if rd:
                    if kind == 'vmem': d = 5
                    elif kind == 'lane': d = 4
                    elif isvalu or kind == 'mfma': d = 2
                    elif kind == 'salu': d = 1
            need = max(need, d - self._dist(p))
        if isvalu:
            for x in W:
                if x in self.mfmaC: need = max(need, 3 - self._dist(self.mfmaC[x]))
                if x in self.storeR: need = max(need, 2 - self._dist(self.storeR[x]))
        elif kind in ('vmem', 'ds'):
            for x in W:
                if x in self.storeR: need = max(need, 1 - self._dist(self.storeR[x]))
        self._nop(need)
        self.L.append('    ' + text)
        for x in W:
            if kind in ('valu', 'trans', 'lane', 'perm', 'dot', 'mfma'):
                if x[0] == 's' or x in ('vcc', 'exec'): self.lastw[x] = (self.pos, 'valu_s')
                else:
                    kk = {'lane': 'valu', 'perm': 'valu'}.get(kind, kind)
                    self.lastw[x] = (self.pos, kk)
                    self.lastw_meta[x] = srcC if kind == 'mfma' else op
            else:
                self.lastw.pop(x, None)
        if kind == 'mfma':
            for x in C: self.mfmaC[x] = self.pos
        self.pos += 1
    lastw_meta = {}
    def s(self, text):
        toks = re.split(r'[ ,]+', text.strip())
        op = toks[0]
        ops = [t for t in re.findall(r'[vsa]\[\d+:\d+\]|[vsa]\d+|vcc|exec|m0', text[len(op):])]
        if op.startswith('s_cmp') or op.startswith('s_bitcmp') or op.startswith('s_cbranch') or op in ('s_branch', 's_barrier', 's_waitcnt', 's_sleep', 's_endpgm', 's_setprio'):
            self.ins(text, r=ops, kind='salu')
        else:
            self.ins(text, w=ops[:1], r=ops[1:], kind='salu')
    def v(self, text, kind=None):
        op = text.split()[0]
        body = text[len(op):]
        mods = re.search(r'\b(row_\w+|quad_perm|wave_\w+)', body)
        dpp = bool(mods) or op.endswith('_dpp')
        ops = re.findall(r'[vsa]\[\d+:\d+\]|[vsa]\d+|vcc|exec|m0', body)
        base = re.sub(r'_(e32|e64|dpp)$', '', op)
        w = ops[:1]; r = ops[1:]; srcC = None
        if kind is None:
            if base in TRANS: kind = 'trans'
            elif base.startswith('v_dot2'): kind = 'dot'
            elif base.startswith('v_mfma'): kind = 'mfma'
            elif base in ('v_readlane_b32', 'v_readfirstlane_b32'): kind = 'lane'
            elif base.startswith('v_permlane'): kind = 'perm'
            else: kind = 'valu'
        if kind == 'mfma':
            parts = [p.strip() for p in body.split(',')]
            w = [parts[0]]; r = [parts[1], parts[2]]; srcC = parts[3].split()[0] if regs(parts[3].split()[0]) else None
        elif kind == 'dot':
            parts = [p.strip().split()[0] for p in body.split(',')]
            w = [parts[0]]; r = [parts[1], parts[2]]
            if base == 'v_dot2c_f32_bf16': srcC = parts[0]
            elif regs(parts[3]): srcC = parts[3]
        elif kind == 'perm':
            w = ops; r = ops
        elif base in ('v_fmac_f32',):
            r = ops
        elif base.startswith('v_cmp'):
            pass
        elif base in ('v_add_co_u32', 'v_addc_co_u32'):
            w = ops[:2]; r = ops[2:]
        if dpp and 'bank_mask:0xf' not in body and kind != 'dot':
            pass
        if base == 'v_cndmask_b32' and len(ops) == 3 and op.endswith('_e32'): r = ops[1:] + ['vcc']
        self.ins(text, w=w, r=r, kind=kind, dpp=dpp, srcC=srcC)
    def vm_op(self, text, w=(), r=(), tag=None, store_data=None):
        self.ins(text, w=w, r=r, kind='vmem')
        self.vm.append(tag)
        if store_data and len(regs(store_data)) >= 3:
            for x in regs(store_data): self.storeR[x] = self.pos - 1
    def load(self, op, dst, voff, srd, soff, imm=0, flags='', tag=None):
        t = '%s %s, %s, %s, %s offen' % (op, dst, voff, srd, soff)
        if imm: t += ' offset:%d' % imm
        if flags: t += ' ' + flags
        self.vm_op(t, w=[dst], r=[voff, srd, soff], tag=tag)
    def store(self, op, src, voff, srd, soff, imm=0, flags='', tag=None):
        t = '%s %s, %s, %s, %s offen' % (op, src, voff, srd, soff)
        if imm: t += ' offset:%d' % imm
        if flags: t += ' ' + flags
        self.vm_op(t, r=[src, voff, srd, soff], tag=tag, store_data=src)
    def wait_vm(self, tag):
        idx = max(i for i, t in enumerate(self.vm) if t == tag)
        n = len(self.vm) - 1 - idx
        if getattr(self, 'vm_done', -1) >= idx: return
        assert n <= 63, n
        self.vm_done = idx
        self.s('s_waitcnt vmcnt(%d)' % n)
    def ds(self, text):
        op = text.split()[0]
        ops = re.findall(r'[vsa]\[\d+:\d+\]|[vsa]\d+', text[len(op):])
        if op.startswith('ds_read') or '_rtn' in op or op.startswith('ds_bperm') or op.startswith('ds_swiz'):
            self.ins(text, w=ops[:1], r=ops[1:], kind='ds')
        else:
            self.ins(text, r=ops, kind='ds')
    def text(self):
        return '\n'.join(self.L) + '\n'
```

```python
import sys, math, json
from asmlib import Em
NAME = "concat_heads__mha_block_cached__gqa_block_cached__decode_kernel"
HEADER = open(__file__.replace('gen1.py', 'header.txt')).read() if False else None

def bitrev4(i): return ((i & 1) << 3) | ((i & 2) << 1) | ((i & 4) >> 1) | ((i & 8) >> 3)

def gen(Ds=8, R=16, stag=0, kvflags="nt", wqflags="", woflags="", wo_start=24, wo_step=4, stamps=False, ilv_wq=True, name=NAME):
    W = 8
    e = Em()
    s, v, ds = e.s, e.v, e.ds
    LDS_Q, LDS_O, LDS_ML, LDS_R = 0, 4096, 8192, 8448
    LDS_BYTES = LDS_R + 8*2560
    hdr = []
    hdr.append("; decode attention (two blocks) fused with the q / output projections; generated by my gen1.py")
    hdr.append("; @launch grid=(256,1,1) block=(512,1,1) lds=%d" % LDS_BYTES)
    hdr.append('.amdgcn_target "amdgcn-amd-amdhsa--gfx950"')
    hdr.append(".text\n.globl %s\n.p2align 8\n.type %s,@function\n%s:" % (name, name, name))
    K_, V_, WQ_, WO_, X_, WS_, DBG_, OUT_ = "s[24:27]", "s[28:31]", "s[32:35]", "s[36:39]", "s[40:43]", "s[44:47]", "s[48:51]", "s[52:55]"
    sW, sH, sB, sBR, sK, sT, sG, sV = "s56", "s57", "s58", "s59", "s60", "s61", "s62", "s63"
    mB1, mB0 = "s[64:65]", "s[66:67]"
    sM, sL = "s68", "s69"
    sWO = "s70"
    vLane16, vWQ, vWO = "v1", "v2", "v3"
    MASK = [4, 5, 6, 7]
    AOP = [8, 12]
    Q = 16
    S = 20
    Pp = 28
    Pa, Pb, Pc, Pt = 32, 34, 36, 38
    XP = 40
    ACC = 44
    ACO = 48
    vT = 68
    vLdsW = 76
    vChk = 77
    vC = 78
    vOff = 79
    RING = 80
    WR = RING + R*4
    NV = WR + 80
    def slot(n): return "v[%d:%d]" % (RING + 4*(n % R), RING + 4*(n % R) + 3)
    def wreg(j): return "v[%d:%d]" % (WR + 4*j, WR + 4*j + 3)
    def rng(a, n): return "v[%d:%d]" % (a, a+n-1)
    def stamp(k):
        if stamps: s("s_memrealtime s[%d:%d]" % (80+2*k, 81+2*k))
    s("s_cmp_ge_u32 s2, 256")
    s("s_cbranch_scc1 L_done")
    stamp(0)
    s("s_lshr_b32 %s, s2, 7" % sBR)
    s("s_mul_i32 s3, %s, 40" % sBR)
    s("s_load_dwordx8 s[4:11], s[0:1], s3")
    s("s_add_u32 s3, s3, 32")
    s("s_load_dwordx2 s[12:13], s[0:1], s3")
    s("s_load_dwordx4 s[16:19], s[0:1], 80")
    s("s_load_dwordx2 s[20:21], s[0:1], 96")
    v("v_lshrrev_b32 v60, 6, v0")
    v("v_and_b32 v61, 63, v0")
    v("v_readfirstlane_b32 %s, v60" % sW)
    v("v_lshlrev_b32 %s, 4, v61" % vLane16)
    v("v_lshrrev_b32 v62, 4, v61")
    v("v_and_b32 v63, 15, v0")
    s("s_and_b32 %s, s2, 31" % sH)
    s("s_lshr_b32 %s, s2, 5" % sG)
    s("s_and_b32 %s, %s, 3" % (sB, sG))
    s("s_and_b32 s14, s2, 127")
    s("s_lshl_b32 s14, s14, 20")
    for srd, nrec in ((24, 1 << 20), (28, 1 << 20), (32, 640*8192), (36, 4096*1280), (40, 4*1280), (44, 160*4096 + (1 << 16)), (48, 256), (52, 4*2560)):
        s("s_mov_b32 s%d, 0x%x" % (srd+2, nrec))
        s("s_mov_b32 s%d, 0x20000" % (srd+3))
    v("v_lshlrev_b32 v68, 4, v63")
    v("v_lshl_add_u32 %s, v62, 13, v68" % vWQ)
    v("v_lshl_add_u32 v69, v63, 2, v62")
    v("v_lshlrev_b32 v69, 1, v69")
    if stag:
        s("s_mul_i32 %s, s2, %d" % (sK, stag))
        s("s_and_b32 %s, %s, 31" % (sK, sK))
        s("s_lshl_b32 %s, %s, 3" % (sK, sK))
        s("s_add_u32 %s, %s, %s" % (sK, sK, sW))
        s("s_lshl_b32 %s, %s, 12" % (sK, sK))
    else:
        s("s_lshl_b32 %s, %s, 12" % (sK, sW))
    s("s_mov_b32 %s, %s" % (sV, sK))
    s("s_mul_i32 s15, %s, %d" % (sW, 80*8192))
    s("s_lshl_b32 %s, %s, 8" % (sT, sH))
    s("s_add_u32 %s, %s, s15" % (sT, sT))
    s("s_mul_i32 s22, %s, 1280" % sB)
    s("s_mul_i32 s23, %s, 160" % sW)
    s("s_add_u32 s22, s22, s23")
    s("s_mul_i32 s23, %s, 20" % sG)
    s("s_add_u32 s23, s23, %s" % sH)
    s("s_lshl_b32 s23, s23, 12")
    s("s_cmp_lt_u32 %s, 20" % sH)
    s("s_cselect_b32 s71, s23, 0x40000000")
    v("v_lshlrev_b32 v70, 3, v0")
    v("v_mov_b32 v72, -1")
    v("v_mov_b32 v73, -1")
    s("s_waitcnt lgkmcnt(0)")
    s("s_add_u32 s24, s6, s14"); s("s_addc_u32 s25, s7, 0")
    s("s_mov_b32 s32, s10"); s("s_mov_b32 s33, s11")
    s("s_mov_b32 s40, s4"); s("s_mov_b32 s41, s5")
    s("s_mov_b32 s44, s20"); s("s_mov_b32 s45, s21")
    e.load("buffer_load_ushort", "v%d" % XP, "v69", X_, "s22", 0, "", tag="x0")
    e.load("buffer_load_ushort", "v%d" % (XP+1), "v69", X_, "s22", 128, "", tag="x1")
    e.store("buffer_store_dwordx2", "v[72:73]", "v70", WS_, "s71", 0, "sc1", tag="clear")
    issued = [0]
    def issue_kv():
        n = issued[0]
        if n >= 256: return
        issued[0] += 1
        isV = n >= 128
        so = sV if isV else sK
        p = n % 4
        e.load("buffer_load_dwordx4", slot(n), vLane16, V_ if isV else K_, so, p*1024, kvflags, tag="kv%d" % n)
        if p == 3:
            s("s_add_u32 %s, %s, 0x8000" % (so, so))
            if stag: s("s_and_b32 %s, %s, 0xfffff" % (so, so))
    for j in range(20):
        e.load("buffer_load_dwordx4", wreg(j), vWQ, WQ_, sT, 0, wqflags, tag="wq%d" % j)
        s("s_add_u32 %s, %s, 0x8000" % (sT, sT))
        if ilv_wq and issued[0] < R and j >= 2: issue_kv()
    while issued[0] < R: issue_kv()
    stamp(1)
    s("s_add_u32 s28, s8, s14"); s("s_addc_u32 s29, s9, 0")
    s("s_mov_b32 s36, s12"); s("s_mov_b32 s37, s13")
    s("s_mov_b32 s48, s18"); s("s_mov_b32 s49, s19")
    s("s_mov_b32 s52, s16"); s("s_mov_b32 s53, s17")
    s("s_lshl_b32 %s, %s, 7" % (sWO, sH))
    s("s_lshl_b32 s15, %s, 4" % sW)
    s("s_add_u32 %s, %s, s15" % (sWO, sWO))
    s("s_mul_i32 %s, %s, 1280" % (sWO, sWO))
    s("s_mov_b32 s64, 0xcccccccc"); s("s_mov_b32 s65, 0xcccccccc")
    s("s_mov_b32 s66, 0xaaaaaaaa"); s("s_mov_b32 s67, 0xaaaaaaaa")
    v("v_mul_u32_u24 v71, 1280, v62")
    v("v_add_u32 %s, v71, v68" % vWO)
    v("v_and_b32 v71, 1, v63")
    v("v_lshlrev_b32 v71, 4, v71")
    v("v_mov_b32 v72, 0xffff")
    v("v_lshlrev_b32 v71, v71, v72")
    v("v_lshrrev_b32 v72, 1, v63")
    for w in range(4):
        v("v_cmp_eq_u32 vcc, %d, v72" % w)
        v("v_cndmask_b32_e32 v%d, 0, v71, vcc" % MASK[w])
    v("v_lshlrev_b32 v71, 5, v63")
    v("v_lshl_add_u32 v71, v62, 4, v71")
    s("s_lshl_b32 s15, %s, 9" % sW)
    v("v_add_u32 v%d, s15, v71" % vLdsW)
    v("v_mov_b32 v%d, 0x%08x" % (vC, f2u(math.log2(math.e)/math.sqrt(128.0))))
    e.wait_vm("x1")
    v("v_lshl_or_b32 v%d, v%d, 16, v%d" % (XP, XP, XP))
    v("v_lshl_or_b32 v%d, v%d, 16, v%d" % (XP+1, XP+1, XP+1))
    def buildA(buf, src, lane):
        for w in range(4):
            v("v_and_b32_dpp v%d, v%d, v%d row_newbcast:%d row_mask:0xf bank_mask:0xf" % (AOP[buf]+w, src, MASK[w], lane))
    buildA(0, XP, 0)
    for j in range(20):
        if j+1 < 20: buildA((j+1) & 1, XP + (j+1)//16, (j+1) % 16)
        e.wait_vm("wq%d" % j)
        v("v_mfma_f32_16x16x32_bf16 %s, %s, %s, %s" % (rng(ACC, 4), rng(AOP[j & 1], 4), wreg(j), rng(ACC, 4) if j else "0"))
    s("s_mov_b32 exec_hi, 0")
    ds("ds_write_b128 v%d, %s offset:%d" % (vLdsW, rng(ACC, 4), LDS_Q))
    s("s_mov_b64 exec, -1")
    v("v_lshlrev_b32 v71, 5, v63")
    s("s_waitcnt lgkmcnt(0)")
    s("s_barrier")
    for u in range(8):
        ds("ds_read_b128 %s, v71 offset:%d" % (rng(WR+8*u, 4), LDS_Q + u*512))
        ds("ds_read_b128 %s, v71 offset:%d" % (rng(WR+8*u+4, 4), LDS_Q + u*512 + 16))
    v("v_mov_b32 v72, 1")
    v("v_mov_b32 v73, 0x40000000")
    v("v_cmp_eq_u32 vcc, 0, v0")
    v("v_cndmask_b32_e32 v73, v73, v0, vcc")
    s("s_lshr_b32 s15, s71, 30")
    s("s_lshl_b32 s15, s15, 30")
    e.vm_op("buffer_atomic_add v72, v73, %s, s15 offen sc1" % DBG_, r=["v72", "v73", DBG_, "s15"], tag="sig")
    for u in range(1, 8):
        s("s_waitcnt lgkmcnt(%d)" % (14 - 2*u))
        for k in range(0, 8, 2):
            v("v_pk_add_f32 %s, %s, %s" % (rng(WR+k, 2), rng(WR+k, 2), rng(WR+8*u+k, 2)))
    for k in range(4):
        v("v_cvt_pk_bf16_f32 v%d, v%d, v%d" % (Q+k, WR+2*k, WR+2*k+1))
    stamp(2)
    pend = []
    def lvlA(n):
        i = n % 16; T = n//16
        d = Pa + ((i >> 1) & 1)
        v("v_add_f32_dpp v%d, v%d, v%d row_ror:8 row_mask:0xf bank_mask:0x3" % (d, Pp+(n-1) % 4, Pp+(n-1) % 4))
        v("v_add_f32_dpp v%d, v%d, v%d row_ror:8 row_mask:0xf bank_mask:0xc" % (d, Pp+n % 4, Pp+n % 4))
        if i % 4 == 3: pend.append(lambda: lvlB(n))
    def lvlB(n):
        i = n % 16
        d = Pb + ((i >> 2) & 1)
        v("v_add_f32_dpp v%d, v%d, v%d row_half_mirror row_mask:0xf bank_mask:0x5" % (d, Pa, Pa))
        v("v_add_f32_dpp v%d, v%d, v%d row_half_mirror row_mask:0xf bank_mask:0xa" % (d, Pa+1, Pa+1))
        if i % 8 == 7: pend.append(lambda: lvlC(n))
    def lvlC(n):
        i = n % 16
        d = Pc + ((i >> 3) & 1)
        v("v_add_f32_dpp v%d, v%d, v%d quad_perm:[2,3,0,1] row_mask:0xf bank_mask:0xf" % (Pt, Pb, Pb))
        v("v_add_f32_dpp v%d, v%d, v%d quad_perm:[2,3,0,1] row_mask:0xf bank_mask:0xf" % (Pt+1, Pb+1, Pb+1))
        v("v_cndmask_b32_e64 v%d, v%d, v%d, %s" % (d, Pt, Pt+1, mB1))
        if i == 15: pend.append(lambda: lvlD(n))
    def lvlD(n):
        T = n//16
        v("v_add_f32_dpp v%d, v%d, v%d quad_perm:[1,0,3,2] row_mask:0xf bank_mask:0xf" % (Pt, Pc, Pc))
        v("v_add_f32_dpp v%d, v%d, v%d quad_perm:[1,0,3,2] row_mask:0xf bank_mask:0xf" % (Pt+1, Pc+1, Pc+1))
        v("v_cndmask_b32_e64 v%d, v%d, v%d, %s" % (S+T, Pt, Pt+1, mB0))
    wo_next = [0]
    def issue_wo():
        j = wo_next[0]
        if j >= 20: return
        wo_next[0] += 1
        jj, ct = j//5, j % 5
        e.load("buffer_load_dwordx4", wreg(j), vWO, WO_, sWO, ct*256, woflags, tag="wo%d" % j)
        if ct == 4: s("s_add_u32 %s, %s, %d" % (sWO, sWO, 4*1280))
    for n in range(128):
        e.wait_vm("kv%d" % n)
        base = RING + 4*(n % R)
        p = Pp + n % 4
        v("v_dot2_f32_bf16 v%d, v%d, v%d, 0" % (p, base, Q))
        for k in range(1, 4):
            v("v_dot2_f32_bf16 v%d, v%d, v%d, v%d" % (p, base+k, Q+k, p))
        if issued[0] < n + 1 + Ds: issue_kv()
        if n >= wo_start and (n - wo_start) % wo_step == 0: issue_wo()
        if pend: pend.pop(0)()
        if n % 2 == 1: pend.append(lambda n=n: lvlA(n))
    while pend: pend.pop(0)()
    while wo_next[0] < 20: issue_wo()
    stamp(3)
    t0 = vT
    v("v_max3_f32 v%d, v%d, v%d, v%d" % (t0, S, S+1, S+2))
    v("v_max3_f32 v%d, v%d, v%d, v%d" % (t0+1, S+3, S+4, S+5))
    v("v_max3_f32 v%d, v%d, v%d, v%d" % (t0, t0, S+6, S+7))
    v("v_max_f32 v%d, v%d, v%d" % (t0, t0, t0+1))
    def wave_reduce(op, r, dst):
        for sh in (8, 4, 2, 1):
            v("%s_dpp v%d, v%d, v%d row_ror:%d row_mask:0xf bank_mask:0xf" % (op, r, r, r, sh))
        v("%s_dpp v%d, v%d, v%d row_bcast:15 row_mask:0xa bank_mask:0xf" % (op, r, r, r))
        v("%s_dpp v%d, v%d, v%d row_bcast:31 row_mask:0xc bank_mask:0xf" % (op, r, r, r))
        v("v_readlane_b32 %s, v%d, 63" % (dst, r))
    wave_reduce("v_max_f32", t0, sM)
    v("v_mul_f32 v%d, %s, v%d" % (t0+2, sM, vC))
    for T in range(8):
        v("v_fma_f32 v%d, v%d, v%d, -v%d" % (S+T, S+T, vC, t0+2))
    for T in range(8):
        v("v_exp_f32 v%d, v%d" % (S+T, S+T))
    v("v_add_f32 v%d, v%d, v%d" % (t0, S, S+1))
    for T in range(2, 8):
        v("v_add_f32 v%d, v%d, v%d" % (t0, t0, S+T))
    for T in range(8):
        v("v_cvt_pk_bf16_f32 v%d, v%d, v%d" % (S+T, S+T, S+T))
    wave_reduce("v_add_f32", t0, sL)
    v("v_mov_b32 v%d, %s" % (t0+3, sL))
    s("s_lshl_b32 s15, %s, 3" % sW)
    v("v_mov_b32 v%d, s15" % t0)
    s("s_mov_b64 exec, 1")
    ds("ds_write_b64 v%d, %s offset:%d" % (t0, rng(t0+2, 2), LDS_ML))
    s("s_mov_b64 exec, -1")
    buildA(0, S, bitrev4(0))
    for n in range(128):
        e.wait_vm("kv%d" % (128+n))
        v("v_mfma_f32_16x16x32_bf16 %s, %s, %s, %s" % (rng(ACC, 4), rng(AOP[n & 1], 4), slot(128+n), rng(ACC, 4) if n else "0"))
        if n+1 < 128: buildA((n+1) & 1, S + (n+1)//16, bitrev4((n+1) % 16))
        issue_kv()
        if n == 64:
            v("v_mov_b32 v%d, 0" % vOff)
            e.load("buffer_load_dword", "v%d" % vChk, "v%d" % vOff, DBG_, "0", 0, "sc1", tag="chk")
        if n == 100:
            v("v_and_b32 v%d, 3, v63" % t0)
            v("v_lshl_add_u32 v%d, v%d, 2, v62" % (t0, t0))
            v("v_lshlrev_b32 v%d, 2, v%d" % (t0, t0))
            s("s_lshl_b32 s15, %s, 6" % sW)
            v("v_add_u32 v%d, s15, v%d" % (t0, t0))
            v("v_mov_b32 v%d, 0" % (t0+1))
            s("s_mul_i32 s15, %s, %d" % (sW, 2560-512))
            v("v_add_u32 v%d, s15, v%d" % (t0+2, vLdsW))
            v("v_lshlrev_b32 v%d, 4, v0" % (t0+3))
            v("v_lshrrev_b32 v%d, 3, v0" % (t0+4))
            v("v_lshlrev_b32 v%d, 12, v%d" % (t0+4, t0+4))
            v("v_and_b32 v%d, 7, v0" % (t0+5))
            v("v_lshl_add_u32 v%d, v%d, 4, v%d" % (t0+4, t0+5, t0+4))
            s("s_mul_i32 s72, %s, %d" % (sG, 20*4096))
            s("s_lshl_b32 s15, %s, 7" % sH)
            s("s_add_u32 s72, s72, s15")
    stamp(4)
    s("s_mov_b32 exec_hi, 0")
    ds("ds_write_b128 v%d, %s offset:%d" % (vLdsW, rng(ACC, 4), LDS_O))
    s("s_mov_b64 exec, -1")
    s("s_waitcnt lgkmcnt(0)")
    s("s_barrier")
    ML = RING
    OP = RING + 16
    E = RING + 24
    for k in range(4):
        ds("ds_read_b128 %s, v%d offset:%d" % (rng(ML+4*k, 4), t0+1, LDS_ML + 16*k))
    for u in range(8):
        ds("ds_read_b32 v%d, v%d offset:%d" % (OP+u, t0, LDS_O + u*512))
    s("s_waitcnt lgkmcnt(8)")
    M = RING + 32
    v("v_max3_f32 v%d, v%d, v%d, v%d" % (M, ML, ML+2, ML+4))
    v("v_max3_f32 v%d, v%d, v%d, v%d" % (M+1, ML+6, ML+8, ML+10))
    v("v_max3_f32 v%d, v%d, v%d, v%d" % (M, M, ML+12, ML+14))
    v("v_max_f32 v%d, v%d, v%d" % (M, M, M+1))
    for u in range(8): v("v_sub_f32 v%d, v%d, v%d" % (E+u, ML+2*u, M))
    for u in range(8): v("v_exp_f32 v%d, v%d" % (E+u, E+u))
    v("v_mul_f32 v%d, v%d, v%d" % (M, E, ML+1))
    for u in range(1, 8): v("v_fmac_f32 v%d, v%d, v%d" % (M, E+u, ML+2*u+1))
    v("v_rcp_f32 v%d, v%d" % (M, M))
    s("s_waitcnt lgkmcnt(0)")
    v("v_mul_f32 v%d, v%d, v%d" % (M+1, E, OP))
    for u in range(1, 8): v("v_fmac_f32 v%d, v%d, v%d" % (M+1, E+u, OP+u))
    v("v_mul_f32 v%d, v%d, v%d" % (M+1, M+1, M))
    v("v_cvt_pk_bf16_f32 v%d, v%d, v%d" % (M+1, M+1, M+1))
    buildA(0, M+1, 0)
    for jj in range(4):
        if jj+1 < 4: buildA((jj+1) & 1, M+1, jj+1)
        for ct in range(5):
            a = rng(ACO+4*ct, 4)
            v("v_mfma_f32_16x16x32_bf16 %s, %s, %s, %s" % (a, rng(AOP[jj & 1], 4), wreg(jj*5+ct), a if jj else "0"))
    s("s_mov_b32 exec_hi, 0")
    for ct in range(5):
        ds("ds_write_b128 v%d, %s offset:%d" % (t0+2, rng(ACO+4*ct, 4), LDS_R + ct*512))
    s("s_mov_b64 exec, -1")
    s("s_waitcnt lgkmcnt(0)")
    s("s_barrier")
    stamp(5)
    s("s_cmp_ge_u32 %s, 3" % sW)
    s("s_cbranch_scc1 L_consumer")
    v("v_cmp_gt_u32 vcc, 160, v0")
    s("s_and_saveexec_b64 s[74:75], vcc")
    for u in range(8):
        ds("ds_read_b128 %s, v%d offset:%d" % (rng(RING+4*u, 4), t0+3, LDS_R + u*2560))
    v("v_readfirstlane_b32 s15, v%d" % vChk)
    s("s_mov_b32 s73, 0")
    e.label("L_chk")
    s("s_cmp_ge_u32 s15, 160")
    s("s_cbranch_scc1 L_chk_ok")
    s("s_add_u32 s73, s73, 1")
    s("s_cmp_ge_u32 s73, 0x40000")
    s("s_cbranch_scc1 L_chk_ok")
    s("s_sleep 4")
    e.ins("buffer_load_dword v%d, v%d, %s, 0 offen sc1" % (vChk, vOff, DBG_), w=["v%d" % vChk], r=["v%d" % vOff], kind='vmem')
    s("s_waitcnt vmcnt(0)")
    v("v_readfirstlane_b32 s15, v%d" % vChk)
    s("s_branch L_chk")
    e.label("L_chk_ok")
    for u in range(1, 8):
        s("s_waitcnt lgkmcnt(%d)" % (7-u))
        v("v_pk_add_f32 %s, %s, %s" % (rng(RING, 2), rng(RING, 2), rng(RING+4*u, 2)))
        v("v_pk_add_f32 %s, %s, %s" % (rng(RING+2, 2), rng(RING+2, 2), rng(RING+4*u+2, 2)))
    for k in range(4):
        v("v_min_u32 v%d, -2, v%d" % (RING+k, RING+k))
    e.ins("buffer_store_dwordx4 %s, v%d, %s, s72 offen sc1" % (rng(RING, 4), t0+4, WS_), r=[rng(RING, 4), "v%d" % (t0+4), "s72"], kind='vmem')
    if stamps:
        s("s_waitcnt vmcnt(0)")
        stamp(6)
        s("s_branch L_stamps")
    s("s_endpgm")
    e.fence()
    e.label("L_consumer")
    s("s_cmp_lg_u32 %s, 3" % sW)
    s("s_cbranch_scc1 L_done")
    s("s_cmp_ge_u32 %s, 20" % sH)
    s("s_cbranch_scc1 L_done")
    s("s_mov_b32 s73, 0")
    e.label("L_poll")
    for k in range(4):
        e.ins("buffer_load_dwordx4 %s, %s, %s, s71 offen offset:%d sc1" % (rng(RING+4*k, 4), vLane16, WS_, k*1024), w=[rng(RING+4*k, 4)], r=[vLane16, "s71"], kind='vmem')
    s("s_waitcnt vmcnt(0)")
    v("v_max3_u32 v%d, v%d, v%d, v%d" % (t0, RING, RING+1, RING+2))
    for k in range(3, 15, 2):
        v("v_max3_u32 v%d, v%d, v%d, v%d" % (t0, t0, RING+k, RING+k+1))
    v("v_max_u32 v%d, v%d, v%d" % (t0, t0, RING+15))
    v("v_cmp_eq_u32 vcc, -1, v%d" % t0)
    s("s_add_u32 s73, s73, 1")
    s("s_cmp_ge_u32 s73, 0x40000")
    s("s_cbranch_scc1 L_poll_ok")
    e.ins("s_cbranch_vccz L_poll_ok", r=["vcc"], kind='salu')
    s("s_sleep 2")
    s("s_branch L_poll")
    e.label("L_poll_ok")
    for k in range(1, 4):
        v("v_pk_add_f32 %s, %s, %s" % (rng(RING, 2), rng(RING, 2), rng(RING+4*k, 2)))
        v("v_pk_add_f32 %s, %s, %s" % (rng(RING+2, 2), rng(RING+2, 2), rng(RING+4*k+2, 2)))
    for k in range(4):
        v("v_add_f32_dpp v%d, v%d, v%d row_ror:8 row_mask:0xf bank_mask:0xf" % (RING+k, RING+k, RING+k))
    for sw in ("v_permlane16_swap_b32", "v_permlane32_swap_b32"):
        for k in range(4): v("v_mov_b32 v%d, v%d" % (RING+4+k, RING+k))
        for k in range(4): v("%s v%d, v%d" % (sw, RING+k, RING+4+k))
        for k in range(4): v("v_add_f32 v%d, v%d, v%d" % (RING+k, RING+k, RING+4+k))
    v("v_cvt_pk_bf16_f32 v%d, v%d, v%d" % (RING, RING, RING+1))
    v("v_cvt_pk_bf16_f32 v%d, v%d, v%d" % (RING+1, RING+2, RING+3))
    v("v_lshrrev_b32 v%d, 1, %s" % (t0, vLane16))
    s("s_mul_i32 s15, %s, 2560" % sB)
    s("s_mul_i32 s14, %s, 1280" % sBR)
    s("s_add_u32 s15, s15, s14")
    s("s_lshl_b32 s14, %s, 6" % sH)
    s("s_add_u32 s15, s15, s14")
    s("s_mov_b64 exec, 0xff")
    e.ins("buffer_store_dwordx2 %s, v%d, %s, s15 offen" % (rng(RING, 2), t0, OUT_), r=[rng(RING, 2), "v%d" % t0, "s15"], kind='vmem')
    if stamps:
        s("s_waitcnt vmcnt(0)")
        stamp(6)
        e.label("L_stamps")
        s("s_waitcnt lgkmcnt(0)")
        s("s_cmp_eq_u32 %s, 3" % sW)
        s("s_cselect_b32 s15, 1, 0")
        s("s_cmp_eq_u32 %s, 0" % sW)
        s("s_cselect_b32 s14, 1, s15")
        s("s_cmp_eq_u32 s14, 0")
        s("s_cbranch_scc1 L_done")
        s("s_lshl_b32 s14, s2, 1")
        s("s_add_u32 s14, s14, s15")
        s("s_lshl_b32 s14, s14, 6")
        s("s_add_u32 s14, s14, %d" % (160*4096))
        s("s_getreg_b32 s94, hwreg(HW_REG_XCC_ID)")
        s("s_mov_b64 exec, 1")
        v("v_mov_b32 v%d, 0" % t0)
        for k in range(8):
            v("v_mov_b32 v%d, s%d" % (RING+k, 80+2*k))
        e.ins("buffer_store_dwordx4 %s, v%d, %s, s14 offen" % (rng(RING, 4), t0, WS_), r=[rng(RING, 4), "v%d" % t0], kind='vmem')
        e.ins("buffer_store_dwordx4 %s, v%d, %s, s14 offen offset:16" % (rng(RING+4, 4), t0, WS_), r=[rng(RING+4, 4), "v%d" % t0], kind='vmem')
    e.label("L_done")
    s("s_endpgm")
    nv = (NV+7)//8*8
    tail = ['.section .rodata,"a"', ".p2align 6", ".amdhsa_kernel %s" % name,
            "  .amdhsa_next_free_vgpr %d" % nv, "  .amdhsa_next_free_sgpr 96", "  .amdhsa_accum_offset %d" % nv,
            "  .amdhsa_group_segment_fixed_size 0", "  .amdhsa_kernarg_size 104", "  .amdhsa_user_sgpr_count 2",
            "  .amdhsa_user_sgpr_kernarg_segment_ptr 1", "  .amdhsa_system_sgpr_workgroup_id_x 1", ".end_amdhsa_kernel"]
    return "\n".join(hdr) + "\n" + e.text() + "\n".join(tail) + "\n"
import struct
def f2u(x): return struct.unpack("<I", struct.pack("<f", x))[0]
if __name__ == "__main__":
    cfg = json.loads(sys.argv[2]) if len(sys.argv) > 2 else {}
    open(sys.argv[1], "w").write(gen(**cfg))
```

```python
import sys, math, json
from asmlib import Em
NAME = "concat_heads__mha_block_cached__gqa_block_cached__decode_kernel"
HEADER = open(__file__.replace('gen1.py', 'header.txt')).read() if False else None

def bitrev4(i): return ((i & 1) << 3) | ((i & 2) << 1) | ((i & 4) >> 1) | ((i & 8) >> 3)

def gen(Ds=8, R=16, stag=0, kvflags="nt", wqflags="", woflags="", wo_start=24, wo_step=4, stamps=False, ilv_wq=True, name=NAME):
    W = 8
    e = Em()
    s, v, ds = e.s, e.v, e.ds
    LDS_Q, LDS_O, LDS_ML, LDS_R = 0, 4096, 8192, 8448
    LDS_BYTES = LDS_R + 8*2560
    hdr = []
    hdr.append("; decode attention (two blocks) fused with the q / output projections; generated by my gen1.py")
    hdr.append("; @launch grid=(256,1,1) block=(512,1,1) lds=%d" % LDS_BYTES)
    hdr.append('.amdgcn_target "amdgcn-amd-amdhsa--gfx950"')
    hdr.append(".text\n.globl %s\n.p2align 8\n.type %s,@function\n%s:" % (name, name, name))
    K_, V_, WQ_, WO_, X_, WS_, DBG_, OUT_ = "s[24:27]", "s[28:31]", "s[32:35]", "s[36:39]", "s[40:43]", "s[44:47]", "s[48:51]", "s[52:55]"
    sW, sH, sB, sBR, sK, sT, sG, sV = "s56", "s57", "s58", "s59", "s60", "s61", "s62", "s63"
    mB1, mB0 = "s[64:65]", "s[66:67]"
    sM, sL = "s68", "s69"
    sWO = "s70"
    vLane16, vWQ, vWO = "v1", "v2", "v3"
    MASK = [4, 5, 6, 7]
    AOP = [8, 12]
    Q = 16
    S = 20
    Pp = 28
    Pa, Pb, Pc, Pt = 32, 34, 36, 38
    XP = 40
    ACC = 44
    ACO = 48
    vT = 68
    vLdsW = 76
    vChk = 77
    vC = 78
    vOff = 79
    RING = 80
    WR = RING + R*4
    NV = WR + 80
    def slot(n): return "v[%d:%d]" % (RING + 4*(n % R), RING + 4*(n % R) + 3)
    def wreg(j): return "v[%d:%d]" % (WR + 4*j, WR + 4*j + 3)
    def rng(a, n): return "v[%d:%d]" % (a, a+n-1)
    def stamp(k):
        if stamps: s("s_memrealtime s[%d:%d]" % (80+2*k, 81+2*k))
    s("s_cmp_ge_u32 s2, 256")
    s("s_cbranch_scc1 L_done")
    stamp(0)
    s("s_lshr_b32 %s, s2, 7" % sBR)
    s("s_mul_i32 s3, %s, 40" % sBR)
    s("s_load_dwordx8 s[4:11], s[0:1], s3")
    s("s_add_u32 s3, s3, 32")
    s("s_load_dwordx2 s[12:13], s[0:1], s3")
    s("s_load_dwordx4 s[16:19], s[0:1], 80")
    s("s_load_dwordx2 s[20:21], s[0:1], 96")
    v("v_lshrrev_b32 v60, 6, v0")
    v("v_and_b32 v61, 63, v0")
    v("v_readfirstlane_b32 %s, v60" % sW)
    v("v_lshlrev_b32 %s, 4, v61" % vLane16)
    v("v_lshrrev_b32 v62, 4, v61")
    v("v_and_b32 v63, 15, v0")
    s("s_and_b32 %s, s2, 31" % sH)
    s("s_lshr_b32 %s, s2, 5" % sG)
    s("s_and_b32 %s, %s, 3" % (sB, sG))
    s("s_and_b32 s14, s2, 127")
    s("s_lshl_b32 s14, s14, 20")
    for srd, nrec in ((24, 1 << 20), (28, 1 << 20), (32, 640*8192), (36, 4096*1280), (40, 4*1280), (44, 160*4096 + (1 << 16)), (48, 256), (52, 4*2560)):
        s("s_mov_b32 s%d, 0x%x" % (srd+2, nrec))
        s("s_mov_b32 s%d, 0x20000" % (srd+3))
    v("v_lshlrev_b32 v68, 4, v63")
    v("v_lshl_add_u32 %s, v62, 13, v68" % vWQ)
    v("v_lshl_add_u32 v69, v63, 2, v62")
    v("v_lshlrev_b32 v69, 1, v69")
    if stag:
        s("s_mul_i32 %s, s2, %d" % (sK, stag))
        s("s_and_b32 %s, %s, 31" % (sK, sK))
        s("s_lshl_b32 %s, %s, 3" % (sK, sK))
        s("s_add_u32 %s, %s, %s" % (sK, sK, sW))
        s("s_lshl_b32 %s, %s, 12" % (sK, sK))
    else:
        s("s_lshl_b32 %s, %s, 12" % (sK, sW))
    s("s_mov_b32 %s, %s" % (sV, sK))
    s("s_mul_i32 s15, %s, %d" % (sW, 80*8192))
    s("s_lshl_b32 %s, %s, 8" % (sT, sH))
    s("s_add_u32 %s, %s, s15" % (sT, sT))
    s("s_mul_i32 s22, %s, 1280" % sB)
    s("s_mul_i32 s23, %s, 160" % sW)
    s("s_add_u32 s22, s22, s23")
    s("s_mul_i32 s23, %s, 20" % sG)
    s("s_add_u32 s23, s23, %s" % sH)
    s("s_lshl_b32 s23, s23, 12")
    s("s_cmp_lt_u32 %s, 20" % sH)
    s("s_cselect_b32 s71, s23, 0x40000000")
    v("v_lshlrev_b32 v70, 3, v0")
    v("v_mov_b32 v72, -1")
    v("v_mov_b32 v73, -1")
    s("s_waitcnt lgkmcnt(0)")
    s("s_add_u32 s24, s6, s14"); s("s_addc_u32 s25, s7, 0")
    s("s_mov_b32 s32, s10"); s("s_mov_b32 s33, s11")
    s("s_mov_b32 s40, s4"); s("s_mov_b32 s41, s5")
    s("s_mov_b32 s44, s20"); s("s_mov_b32 s45, s21")
    e.load("buffer_load_ushort", "v%d" % XP, "v69", X_, "s22", 0, "", tag="x0")
    e.load("buffer_load_ushort", "v%d" % (XP+1), "v69", X_, "s22", 128, "", tag="x1")
    e.store("buffer_store_dwordx2", "v[72:73]", "v70", WS_, "s71", 0, "sc1", tag="clear")
    issued = [0]
    def issue_kv():
        n = issued[0]
        if n >= 256: return
        issued[0] += 1
        isV = n >= 128
        so = sV if isV else sK
        p = n % 4
        e.load("buffer_load_dwordx4", slot(n), vLane16, V_ if isV else K_, so, p*1024, kvflags, tag="kv%d" % n)
        if p == 3:
            s("s_add_u32 %s, %s, 0x8000" % (so, so))
            if stag: s("s_and_b32 %s, %s, 0xfffff" % (so, so))
    for j in range(20):
        e.load("buffer_load_dwordx4", wreg(j), vWQ, WQ_, sT, 0, wqflags, tag="wq%d" % j)
        s("s_add_u32 %s, %s, 0x8000" % (sT, sT))
        if ilv_wq and issued[0] < R and j >= 2: issue_kv()
    while issued[0] < R: issue_kv()
    stamp(1)
    s("s_add_u32 s28, s8, s14"); s("s_addc_u32 s29, s9, 0")
    s("s_mov_b32 s36, s12"); s("s_mov_b32 s37, s13")
    s("s_mov_b32 s48, s18"); s("s_mov_b32 s49, s19")
    s("s_mov_b32 s52, s16"); s("s_mov_b32 s53, s17")
    s("s_lshl_b32 %s, %s, 7" % (sWO, sH))
    s("s_lshl_b32 s15, %s, 4" % sW)
    s("s_add_u32 %s, %s, s15" % (sWO, sWO))
    s("s_mul_i32 %s, %s, 1280" % (sWO, sWO))
    s("s_mov_b32 s64, 0xcccccccc"); s("s_mov_b32 s65, 0xcccccccc")
    s("s_mov_b32 s66, 0xaaaaaaaa"); s("s_mov_b32 s67, 0xaaaaaaaa")
    v("v_mul_u32_u24 v71, 1280, v62")
    v("v_add_u32 %s, v71, v68" % vWO)
    v("v_and_b32 v71, 1, v63")
    v("v_lshlrev_b32 v71, 4, v71")
    v("v_mov_b32 v72, 0xffff")
    v("v_lshlrev_b32 v71, v71, v72")
    v("v_lshrrev_b32 v72, 1, v63")
    for w in range(4):
        v("v_cmp_eq_u32 vcc, %d, v72" % w)
        v("v_cndmask_b32_e32 v%d, 0, v71, vcc" % MASK[w])
    v("v_lshlrev_b32 v71, 5, v63")
    v("v_lshl_add_u32 v71, v62, 4, v71")
    s("s_lshl_b32 s15, %s, 9" % sW)
    v("v_add_u32 v%d, s15, v71" % vLdsW)
    v("v_mov_b32 v%d, 0x%08x" % (vC, f2u(math.log2(math.e)/math.sqrt(128.0))))
    e.wait_vm("x1")
    v("v_lshl_or_b32 v%d, v%d, 16, v%d" % (XP, XP, XP))
    v("v_lshl_or_b32 v%d, v%d, 16, v%d" % (XP+1, XP+1, XP+1))
    def buildA(buf, src, lane):
        for w in range(4):
            v("v_and_b32_dpp v%d, v%d, v%d row_newbcast:%d row_mask:0xf bank_mask:0xf" % (AOP[buf]+w, src, MASK[w], lane))
    buildA(0, XP, 0)
    for j in range(20):
        if j+1 < 20: buildA((j+1) & 1, XP + (j+1)//16, (j+1) % 16)
        e.wait_vm("wq%d" % j)
        v("v_mfma_f32_16x16x32_bf16 %s, %s, %s, %s" % (rng(ACC, 4), rng(AOP[j & 1], 4), wreg(j), rng(ACC, 4) if j else "0"))
    s("s_mov_b32 exec_hi, 0")
    ds("ds_write_b128 v%d, %s offset:%d" % (vLdsW, rng(ACC, 4), LDS_Q))
    s("s_mov_b64 exec, -1")
    v("v_lshlrev_b32 v71, 5, v63")
    s("s_waitcnt lgkmcnt(0)")
    s("s_barrier")
    for u in range(8):
        ds("ds_read_b128 %s, v71 offset:%d" % (rng(WR+8*u, 4), LDS_Q + u*512))
        ds("ds_read_b128 %s, v71 offset:%d" % (rng(WR+8*u+4, 4), LDS_Q + u*512 + 16))
    v("v_mov_b32 v72, 1")
    v("v_mov_b32 v73, 0x40000000")
    v("v_cmp_eq_u32 vcc, 0, v0")
    v("v_cndmask_b32_e32 v73, v73, v0, vcc")
    s("s_lshr_b32 s15, s71, 30")
    s("s_lshl_b32 s15, s15, 30")
    e.vm_op("buffer_atomic_add v72, v73, %s, s15 offen sc1" % DBG_, r=["v72", "v73", DBG_, "s15"], tag="sig")
    for u in range(1, 8):
        s("s_waitcnt lgkmcnt(%d)" % (14 - 2*u))
        for k in range(0, 8, 2):
            v("v_pk_add_f32 %s, %s, %s" % (rng(WR+k, 2), rng(WR+k, 2), rng(WR+8*u+k, 2)))
    for k in range(4):
        v("v_cvt_pk_bf16_f32 v%d, v%d, v%d" % (Q+k, WR+2*k, WR+2*k+1))
    stamp(2)
    pend = []
    def lvlA(n):
        i = n % 16; T = n//16
        d = Pa + ((i >> 1) & 1)
        v("v_add_f32_dpp v%d, v%d, v%d row_ror:8 row_mask:0xf bank_mask:0x3" % (d, Pp+(n-1) % 4, Pp+(n-1) % 4))
        v("v_add_f32_dpp v%d, v%d, v%d row_ror:8 row_mask:0xf bank_mask:0xc" % (d, Pp+n % 4, Pp+n % 4))
        if i % 4 == 3: pend.append(lambda: lvlB(n))
    def lvlB(n):
        i = n % 16
        d = Pb + ((i >> 2) & 1)
        v("v_add_f32_dpp v%d, v%d, v%d row_half_mirror row_mask:0xf bank_mask:0x5" % (d, Pa, Pa))
        v("v_add_f32_dpp v%d, v%d, v%d row_half_mirror row_mask:0xf bank_mask:0xa" % (d, Pa+1, Pa+1))
        if i % 8 == 7: pend.append(lambda: lvlC(n))
    def lvlC(n):
        i = n % 16
        d = Pc + ((i >> 3) & 1)
        v("v_add_f32_dpp v%d, v%d, v%d quad_perm:[2,3,0,1] row_mask:0xf bank_mask:0xf" % (Pt, Pb, Pb))
        v("v_add_f32_dpp v%d, v%d, v%d quad_perm:[2,3,0,1] row_mask:0xf bank_mask:0xf" % (Pt+1, Pb+1, Pb+1))
        v("v_cndmask_b32_e64 v%d, v%d, v%d, %s" % (d, Pt, Pt+1, mB1))
        if i == 15: pend.append(lambda: lvlD(n))
    def lvlD(n):
        T = n//16
        v("v_add_f32_dpp v%d, v%d, v%d quad_perm:[1,0,3,2] row_mask:0xf bank_mask:0xf" % (Pt, Pc, Pc))
        v("v_add_f32_dpp v%d, v%d, v%d quad_perm:[1,0,3,2] row_mask:0xf bank_mask:0xf" % (Pt+1, Pc+1, Pc+1))
        v("v_cndmask_b32_e64 v%d, v%d, v%d, %s" % (S+T, Pt, Pt+1, mB0))
    wo_next = [0]
    def issue_wo():
        j = wo_next[0]
        if j >= 20: return
        wo_next[0] += 1
        jj, ct = j//5, j % 5
        e.load("buffer_load_dwordx4", wreg(j), vWO, WO_, sWO, ct*256, woflags, tag="wo%d" % j)
        if ct == 4: s("s_add_u32 %s, %s, %d" % (sWO, sWO, 4*1280))
    for n in range(128):
        e.wait_vm("kv%d" % n)
        base = RING + 4*(n % R)
        p = Pp + n % 4
        v("v_dot2_f32_bf16 v%d, v%d, v%d, 0" % (p, base, Q))
        for k in range(1, 4):
            v("v_dot2_f32_bf16 v%d, v%d, v%d, v%d" % (p, base+k, Q+k, p))
        if issued[0] < n + 1 + Ds: issue_kv()
        if n >= wo_start and (n - wo_start) % wo_step == 0: issue_wo()
        if pend: pend.pop(0)()
        if n % 2 == 1: pend.append(lambda n=n: lvlA(n))
    while pend: pend.pop(0)()
    while wo_next[0] < 20: issue_wo()
    stamp(3)
    t0 = vT
    v("v_max3_f32 v%d, v%d, v%d, v%d" % (t0, S, S+1, S+2))
    v("v_max3_f32 v%d, v%d, v%d, v%d" % (t0+1, S+3, S+4, S+5))
    v("v_max3_f32 v%d, v%d, v%d, v%d" % (t0, t0, S+6, S+7))
    v("v_max_f32 v%d, v%d, v%d" % (t0, t0, t0+1))
    def wave_reduce(op, r, dst):
        for sh in (8, 4, 2, 1):
            v("%s_dpp v%d, v%d, v%d row_ror:%d row_mask:0xf bank_mask:0xf" % (op, r, r, r, sh))
        v("%s_dpp v%d, v%d, v%d row_bcast:15 row_mask:0xa bank_mask:0xf" % (op, r, r, r))
        v("%s_dpp v%d, v%d, v%d row_bcast:31 row_mask:0xc bank_mask:0xf" % (op, r, r, r))
        v("v_readlane_b32 %s, v%d, 63" % (dst, r))
    wave_reduce("v_max_f32", t0, sM)
    v("v_mul_f32 v%d, %s, v%d" % (t0+2, sM, vC))
    for T in range(8):
        v("v_fma_f32 v%d, v%d, v%d, -v%d" % (S+T, S+T, vC, t0+2))
    for T in range(8):
        v("v_exp_f32 v%d, v%d" % (S+T, S+T))
    v("v_add_f32 v%d, v%d, v%d" % (t0, S, S+1))
    for T in range(2, 8):
        v("v_add_f32 v%d, v%d, v%d" % (t0, t0, S+T))
    for T in range(8):
        v("v_cvt_pk_bf16_f32 v%d, v%d, v%d" % (S+T, S+T, S+T))
    wave_reduce("v_add_f32", t0, sL)
    v("v_mov_b32 v%d, %s" % (t0+3, sL))
    s("s_lshl_b32 s15, %s, 3" % sW)
    v("v_mov_b32 v%d, s15" % t0)
    s("s_mov_b64 exec, 1")
    ds("ds_write_b64 v%d, %s offset:%d" % (t0, rng(t0+2, 2), LDS_ML))
    s("s_mov_b64 exec, -1")
    buildA(0, S, bitrev4(0))
    for n in range(128):
        e.wait_vm("kv%d" % (128+n))
        v("v_mfma_f32_16x16x32_bf16 %s, %s, %s, %s" % (rng(ACC, 4), rng(AOP[n & 1], 4), slot(128+n), rng(ACC, 4) if n else "0"))
        if n+1 < 128: buildA((n+1) & 1, S + (n+1)//16, bitrev4((n+1) % 16))
        issue_kv()
        if n == 64:
            v("v_mov_b32 v%d, 0" % vOff)
            e.load("buffer_load_dword", "v%d" % vChk, "v%d" % vOff, DBG_, "0", 0, "sc1", tag="chk")
        if n == 100:
            v("v_and_b32 v%d, 3, v63" % t0)
            v("v_lshl_add_u32 v%d, v%d, 2, v62" % (t0, t0))
            v("v_lshlrev_b32 v%d, 2, v%d" % (t0, t0))
            s("s_lshl_b32 s15, %s, 6" % sW)
            v("v_add_u32 v%d, s15, v%d" % (t0, t0))
            v("v_mov_b32 v%d, 0" % (t0+1))
            s("s_mul_i32 s15, %s, %d" % (sW, 2560-512))
            v("v_add_u32 v%d, s15, v%d" % (t0+2, vLdsW))
            v("v_lshlrev_b32 v%d, 4, v0" % (t0+3))
            v("v_lshrrev_b32 v%d, 3, v0" % (t0+4))
            v("v_lshlrev_b32 v%d, 12, v%d" % (t0+4, t0+4))
            v("v_and_b32 v%d, 7, v0" % (t0+5))
            v("v_lshl_add_u32 v%d, v%d, 4, v%d" % (t0+4, t0+5, t0+4))
            s("s_mul_i32 s72, %s, %d" % (sG, 20*4096))
            s("s_lshl_b32 s15, %s, 7" % sH)
            s("s_add_u32 s72, s72, s15")
    stamp(4)
    s("s_mov_b32 exec_hi, 0")
    ds("ds_write_b128 v%d, %s offset:%d" % (vLdsW, rng(ACC, 4), LDS_O))
    s("s_mov_b64 exec, -1")
    s("s_waitcnt lgkmcnt(0)")
    s("s_barrier")
    ML = RING
    OP = RING + 16
    E = RING + 24
    for k in range(4):
        ds("ds_read_b128 %s, v%d offset:%d" % (rng(ML+4*k, 4), t0+1, LDS_ML + 16*k))
    for u in range(8):
        ds("ds_read_b32 v%d, v%d offset:%d" % (OP+u, t0, LDS_O + u*512))
    s("s_waitcnt lgkmcnt(8)")
    M = RING + 32
    v("v_max3_f32 v%d, v%d, v%d, v%d" % (M, ML, ML+2, ML+4))
    v("v_max3_f32 v%d, v%d, v%d, v%d" % (M+1, ML+6, ML+8, ML+10))
    v("v_max3_f32 v%d, v%d, v%d, v%d" % (M, M, ML+12, ML+14))
    v("v_max_f32 v%d, v%d, v%d" % (M, M, M+1))
    for u in range(8): v("v_sub_f32 v%d, v%d, v%d" % (E+u, ML+2*u, M))
    for u in range(8): v("v_exp_f32 v%d, v%d" % (E+u, E+u))
    v("v_mul_f32 v%d, v%d, v%d" % (M, E, ML+1))
    for u in range(1, 8): v("v_fmac_f32 v%d, v%d, v%d" % (M, E+u, ML+2*u+1))
    v("v_rcp_f32 v%d, v%d" % (M, M))
    s("s_waitcnt lgkmcnt(0)")
    v("v_mul_f32 v%d, v%d, v%d" % (M+1, E, OP))
    for u in range(1, 8): v("v_fmac_f32 v%d, v%d, v%d" % (M+1, E+u, OP+u))
    v("v_mul_f32 v%d, v%d, v%d" % (M+1, M+1, M))
    v("v_cvt_pk_bf16_f32 v%d, v%d, v%d" % (M+1, M+1, M+1))
    buildA(0, M+1, 0)
    for jj in range(4):
        if jj+1 < 4: buildA((jj+1) & 1, M+1, jj+1)
        for ct in range(5):
            a = rng(ACO+4*ct, 4)
            v("v_mfma_f32_16x16x32_bf16 %s, %s, %s, %s" % (a, rng(AOP[jj & 1], 4), wreg(jj*5+ct), a if jj else "0"))
    s("s_mov_b32 exec_hi, 0")
    for ct in range(5):
        ds("ds_write_b128 v%d, %s offset:%d" % (t0+2, rng(ACO+4*ct, 4), LDS_R + ct*512))
    s("s_mov_b64 exec, -1")
    s("s_waitcnt lgkmcnt(0)")
    s("s_barrier")
    stamp(5)
    s("s_cmp_ge_u32 %s, 3" % sW)
    s("s_cbranch_scc1 L_consumer")
    v("v_cmp_gt_u32 vcc, 160, v0")
    s("s_and_saveexec_b64 s[74:75], vcc")
    for u in range(8):
        ds("ds_read_b128 %s, v%d offset:%d" % (rng(RING+4*u, 4), t0+3, LDS_R + u*2560))
    v("v_readfirstlane_b32 s15, v%d" % vChk)
    s("s_mov_b32 s73, 0")
    e.label("L_chk")
    s("s_cmp_ge_u32 s15, 160")
    s("s_cbranch_scc1 L_chk_ok")
    s("s_add_u32 s73, s73, 1")
    s("s_cmp_ge_u32 s73, 0x40000")
    s("s_cbranch_scc1 L_chk_ok")
    s("s_sleep 4")
    e.ins("buffer_load_dword v%d, v%d, %s, 0 offen sc1" % (vChk, vOff, DBG_), w=["v%d" % vChk], r=["v%d" % vOff], kind='vmem')
    s("s_waitcnt vmcnt(0)")
    v("v_readfirstlane_b32 s15, v%d" % vChk)
    s("s_branch L_chk")
    e.label("L_chk_ok")
    for u in range(1, 8):
        s("s_waitcnt lgkmcnt(%d)" % (7-u))
        v("v_pk_add_f32 %s, %s, %s" % (rng(RING, 2), rng(RING, 2), rng(RING+4*u, 2)))
        v("v_pk_add_f32 %s, %s, %s" % (rng(RING+2, 2), rng(RING+2, 2), rng(RING+4*u+2, 2)))
    for k in range(4):
        v("v_min_u32 v%d, -2, v%d" % (RING+k, RING+k))
    e.ins("buffer_store_dwordx4 %s, v%d, %s, s72 offen sc1" % (rng(RING, 4), t0+4, WS_), r=[rng(RING, 4), "v%d" % (t0+4), "s72"], kind='vmem')
    if stamps:
        s("s_waitcnt vmcnt(0)")
        stamp(6)
        s("s_branch L_stamps")
    s("s_endpgm")
    e.fence()
    e.label("L_consumer")
    s("s_cmp_lg_u32 %s, 3" % sW)
    s("s_cbranch_scc1 L_done")
    s("s_cmp_ge_u32 %s, 20" % sH)
    s("s_cbranch_scc1 L_done")
    s("s_mov_b32 s73, 0")
    e.label("L_poll")
    for k in range(4):
        e.ins("buffer_load_dwordx4 %s, %s, %s, s71 offen offset:%d sc1" % (rng(RING+4*k, 4), vLane16, WS_, k*1024), w=[rng(RING+4*k, 4)], r=[vLane16, "s71"], kind='vmem')
    s("s_waitcnt vmcnt(0)")
    v("v_max3_u32 v%d, v%d, v%d, v%d" % (t0, RING, RING+1, RING+2))
    for k in range(3, 15, 2):
        v("v_max3_u32 v%d, v%d, v%d, v%d" % (t0, t0, RING+k, RING+k+1))
    v("v_max_u32 v%d, v%d, v%d" % (t0, t0, RING+15))
    v("v_cmp_eq_u32 vcc, -1, v%d" % t0)
    s("s_add_u32 s73, s73, 1")
    s("s_cmp_ge_u32 s73, 0x40000")
    s("s_cbranch_scc1 L_poll_ok")
    e.ins("s_cbranch_vccz L_poll_ok", r=["vcc"], kind='salu')
    s("s_sleep 2")
    s("s_branch L_poll")
    e.label("L_poll_ok")
    for k in range(1, 4):
        v("v_pk_add_f32 %s, %s, %s" % (rng(RING, 2), rng(RING, 2), rng(RING+4*k, 2)))
        v("v_pk_add_f32 %s, %s, %s" % (rng(RING+2, 2), rng(RING+2, 2), rng(RING+4*k+2, 2)))
    for k in range(4):
        v("v_add_f32_dpp v%d, v%d, v%d row_ror:8 row_mask:0xf bank_mask:0xf" % (RING+k, RING+k, RING+k))
    for sw in ("v_permlane16_swap_b32", "v_permlane32_swap_b32"):
        for k in range(4): v("v_mov_b32 v%d, v%d" % (RING+4+k, RING+k))
        for k in range(4): v("%s v%d, v%d" % (sw, RING+k, RING+4+k))
        for k in range(4): v("v_add_f32 v%d, v%d, v%d" % (RING+k, RING+k, RING+4+k))
    v("v_cvt_pk_bf16_f32 v%d, v%d, v%d" % (RING, RING, RING+1))
    v("v_cvt_pk_bf16_f32 v%d, v%d, v%d" % (RING+1, RING+2, RING+3))
    v("v_lshrrev_b32 v%d, 1, %s" % (t0, vLane16))
    s("s_mul_i32 s15, %s, 2560" % sB)
    s("s_mul_i32 s14, %s, 1280" % sBR)
    s("s_add_u32 s15, s15, s14")
    s("s_lshl_b32 s14, %s, 6" % sH)
    s("s_add_u32 s15, s15, s14")
    s("s_mov_b64 exec, 0xff")
    e.ins("buffer_store_dwordx2 %s, v%d, %s, s15 offen" % (rng(RING, 2), t0, OUT_), r=[rng(RING, 2), "v%d" % t0, "s15"], kind='vmem')
    if stamps:
        s("s_waitcnt vmcnt(0)")
        stamp(6)
        e.label("L_stamps")
        s("s_waitcnt lgkmcnt(0)")
        s("s_cmp_eq_u32 %s, 3" % sW)
        s("s_cselect_b32 s15, 1, 0")
        s("s_cmp_eq_u32 %s, 0" % sW)
        s("s_cselect_b32 s14, 1, s15")
        s("s_cmp_eq_u32 s14, 0")
        s("s_cbranch_scc1 L_done")
        s("s_lshl_b32 s14, s2, 1")
        s("s_add_u32 s14, s14, s15")
        s("s_lshl_b32 s14, s14, 6")
        s("s_add_u32 s14, s14, %d" % (160*4096))
        s("s_getreg_b32 s94, hwreg(HW_REG_XCC_ID)")
        s("s_mov_b64 exec, 1")
        v("v_mov_b32 v%d, 0" % t0)
        for k in range(8):
            v("v_mov_b32 v%d, s%d" % (RING+k, 80+2*k))
        e.ins("buffer_store_dwordx4 %s, v%d, %s, s14 offen" % (rng(RING, 4), t0, WS_), r=[rng(RING, 4), "v%d" % t0], kind='vmem')
        e.ins("buffer_store_dwordx4 %s, v%d, %s, s14 offen offset:16" % (rng(RING+4, 4), t0, WS_), r=[rng(RING+4, 4), "v%d" % t0], kind='vmem')
    e.label("L_done")
    s("s_endpgm")
    nv = (NV+7)//8*8
    tail = ['.section .rodata,"a"', ".p2align 6", ".amdhsa_kernel %s" % name,
            "  .amdhsa_next_free_vgpr %d" % nv, "  .amdhsa_next_free_sgpr 96", "  .amdhsa_accum_offset %d" % nv,
            "  .amdhsa_group_segment_fixed_size 0", "  .amdhsa_kernarg_size 104", "  .amdhsa_user_sgpr_count 2",
            "  .amdhsa_user_sgpr_kernarg_segment_ptr 1", "  .amdhsa_system_sgpr_workgroup_id_x 1", ".end_amdhsa_kernel"]
    return "\n".join(hdr) + "\n" + e.text() + "\n".join(tail) + "\n"
import struct
def f2u(x): return struct.unpack("<I", struct.pack("<f", x))[0]
STAMP_OFF = 160*4096
def report(stm):
    import numpy as np
    rows = []
    for st in stm:
        w0 = st[:, 0, :]; t0 = w0[:, 0].min()
        cons = [g for g in range(256) if (g & 31) < 20]
        fin = (st[cons, 1, 6] - t0).max()/100
        d = (w0[:, :7] - t0)/100
        rows.append([d[:, 0].max(), np.median(d[:, 1]), np.median(d[:, 2]), d[:, 2].max(), np.median(d[:, 3]), d[:, 3].max(), d[:, 4].min(), d[:, 4].mean(), d[:, 4].max(), d[:, 5].max(), np.median(d[:, 5]-d[:, 4]), d[:, 6].max(), fin])
    r = np.round(np.median(np.array(rows), axis=0), 2)
    print("   lastStart %.2f | issued med %.2f | q-ready med %.2f max %.2f | Kdone med %.2f max %.2f | Vdone(w0) min %.2f mean %.2f max %.2f | outproj done max %.2f (med dur %.2f) | published max %.2f | final %.2f" % tuple(r))
    st = stm[-1]; xcc = st[:, 0, 7] & 7; t0 = st[:, 0, 0].min()
    print("   xcd mean Vdone:", [round(float(((st[xcc == x, 0, 4]-t0)/100).mean()), 1) for x in range(8)])
if __name__ == "__main__":
    cfg = json.loads(sys.argv[2]) if len(sys.argv) > 2 else {}
    open(sys.argv[1], "w").write(gen(**cfg))
```

```python
import sys, math, json
from asmlib import Em
NAME = "concat_heads__mha_block_cached__gqa_block_cached__decode_kernel"
HEADER = open(__file__.replace('gen1.py', 'header.txt')).read() if False else None

def bitrev4(i): return ((i & 1) << 3) | ((i & 2) << 1) | ((i & 4) >> 1) | ((i & 8) >> 3)

def gen(Ds=8, R=16, stag=0, kvflags="nt", wqflags="", woflags="", wo_start=24, wo_step=4, stamps=False, dbgst=False, ilv_wq=True, name=NAME):
    W = 8
    e = Em()
    s, v, ds = e.s, e.v, e.ds
    LDS_Q, LDS_O, LDS_ML, LDS_R = 0, 4096, 8192, 8448
    LDS_BYTES = LDS_R + 8*2560
    hdr = []
    hdr.append("; decode attention (two blocks) fused with the q / output projections; generated by my gen1.py")
    hdr.append("; @launch grid=(256,1,1) block=(512,1,1) lds=%d" % LDS_BYTES)
    hdr.append('.amdgcn_target "amdgcn-amd-amdhsa--gfx950"')
    hdr.append(".text\n.globl %s\n.p2align 8\n.type %s,@function\n%s:" % (name, name, name))
    K_, V_, WQ_, WO_, X_, WS_, DBG_, OUT_ = "s[24:27]", "s[28:31]", "s[32:35]", "s[36:39]", "s[40:43]", "s[44:47]", "s[48:51]", "s[52:55]"
    sW, sH, sB, sBR, sK, sT, sG, sV = "s56", "s57", "s58", "s59", "s60", "s61", "s62", "s63"
    mB1, mB0 = "s[64:65]", "s[66:67]"
    sM, sL = "s68", "s69"
    sWO = "s70"
    vLane16, vWQ, vWO = "v1", "v2", "v3"
    MASK = [4, 5, 6, 7]
    AOP = [8, 12]
    Q = 16
    S = 20
    Pp = 28
    Pa, Pb, Pc, Pt = 32, 34, 36, 38
    XP = 40
    ACC = 44
    ACO = 48
    vT = 68
    vLdsW = 76
    vChk = 77
    vC = 78
    vOff = 79
    RING = 80
    WR = RING + R*4
    NV = WR + 80
    def slot(n): return "v[%d:%d]" % (RING + 4*(n % R), RING + 4*(n % R) + 3)
    def wreg(j): return "v[%d:%d]" % (WR + 4*j, WR + 4*j + 3)
    def rng(a, n): return "v[%d:%d]" % (a, a+n-1)
    def stamp(k):
        if stamps: s("s_memrealtime s[%d:%d]" % (80+2*k, 81+2*k))
    s("s_cmp_ge_u32 s2, 256")
    s("s_cbranch_scc1 L_done")
    stamp(0)
    s("s_lshr_b32 %s, s2, 7" % sBR)
    s("s_mul_i32 s3, %s, 40" % sBR)
    s("s_load_dwordx8 s[4:11], s[0:1], s3")
    s("s_add_u32 s3, s3, 32")
    s("s_load_dwordx2 s[12:13], s[0:1], s3")
    s("s_load_dwordx4 s[16:19], s[0:1], 80")
    s("s_load_dwordx2 s[20:21], s[0:1], 96")
    v("v_lshrrev_b32 v60, 6, v0")
    v("v_and_b32 v61, 63, v0")
    v("v_readfirstlane_b32 %s, v60" % sW)
    v("v_lshlrev_b32 %s, 4, v61" % vLane16)
    v("v_lshrrev_b32 v62, 4, v61")
    v("v_and_b32 v63, 15, v0")
    s("s_and_b32 %s, s2, 31" % sH)
    s("s_lshr_b32 %s, s2, 5" % sG)
    s("s_and_b32 %s, %s, 3" % (sB, sG))
    s("s_and_b32 s14, s2, 127")
    s("s_lshl_b32 s14, s14, 20")
    for srd, nrec in ((24, 1 << 20), (28, 1 << 20), (32, 640*8192), (36, 4096*1280), (40, 4*1280), (44, 160*4096 + (1 << 16)), (48, 256), (52, 4*2560)):
        s("s_mov_b32 s%d, 0x%x" % (srd+2, nrec))
        s("s_mov_b32 s%d, 0x20000" % (srd+3))
    v("v_lshlrev_b32 v68, 4, v63")
    v("v_lshl_add_u32 %s, v62, 13, v68" % vWQ)
    v("v_lshl_add_u32 v69, v63, 2, v62")
    v("v_lshlrev_b32 v69, 1, v69")
    if stag:
        s("s_mul_i32 %s, s2, %d" % (sK, stag))
        s("s_and_b32 %s, %s, 31" % (sK, sK))
        s("s_lshl_b32 %s, %s, 3" % (sK, sK))
        s("s_add_u32 %s, %s, %s" % (sK, sK, sW))
        s("s_lshl_b32 %s, %s, 12" % (sK, sK))
    else:
        s("s_lshl_b32 %s, %s, 12" % (sK, sW))
    s("s_mov_b32 %s, %s" % (sV, sK))
    s("s_mul_i32 s15, %s, %d" % (sW, 80*8192))
    s("s_lshl_b32 %s, %s, 8" % (sT, sH))
    s("s_add_u32 %s, %s, s15" % (sT, sT))
    s("s_mul_i32 s22, %s, 1280" % sB)
    s("s_mul_i32 s23, %s, 160" % sW)
    s("s_add_u32 s22, s22, s23")
    s("s_mul_i32 s23, %s, 20" % sG)
    s("s_add_u32 s23, s23, %s" % sH)
    s("s_lshl_b32 s23, s23, 12")
    s("s_cmp_lt_u32 %s, 20" % sH)
    s("s_cselect_b32 s71, s23, 0x40000000")
    v("v_lshlrev_b32 v70, 3, v0")
    v("v_mov_b32 v72, -1")
    v("v_mov_b32 v73, -1")
    s("s_waitcnt lgkmcnt(0)")
    s("s_add_u32 s24, s6, s14"); s("s_addc_u32 s25, s7, 0")
    s("s_mov_b32 s32, s10"); s("s_mov_b32 s33, s11")
    s("s_mov_b32 s40, s4"); s("s_mov_b32 s41, s5")
    s("s_mov_b32 s44, s20"); s("s_mov_b32 s45, s21")
    e.load("buffer_load_ushort", "v%d" % XP, "v69", X_, "s22", 0, "", tag="x0")
    e.load("buffer_load_ushort", "v%d" % (XP+1), "v69", X_, "s22", 128, "", tag="x1")
    e.store("buffer_store_dwordx2", "v[72:73]", "v70", WS_, "s71", 0, "sc1", tag="clear")
    issued = [0]
    def issue_kv():
        n = issued[0]
        if n >= 256: return
        issued[0] += 1
        isV = n >= 128
        so = sV if isV else sK
        p = n % 4
        e.load("buffer_load_dwordx4", slot(n), vLane16, V_ if isV else K_, so, p*1024, kvflags, tag="kv%d" % n)
        if p == 3:
            s("s_add_u32 %s, %s, 0x8000" % (so, so))
            if stag: s("s_and_b32 %s, %s, 0xfffff" % (so, so))
    for j in range(20):
        e.load("buffer_load_dwordx4", wreg(j), vWQ, WQ_, sT, 0, wqflags, tag="wq%d" % j)
        s("s_add_u32 %s, %s, 0x8000" % (sT, sT))
        if ilv_wq and issued[0] < R and j >= 2: issue_kv()
    while issued[0] < R: issue_kv()
    stamp(1)
    s("s_add_u32 s28, s8, s14"); s("s_addc_u32 s29, s9, 0")
    s("s_mov_b32 s36, s12"); s("s_mov_b32 s37, s13")
    s("s_mov_b32 s48, s18"); s("s_mov_b32 s49, s19")
    s("s_mov_b32 s52, s16"); s("s_mov_b32 s53, s17")
    s("s_lshl_b32 %s, %s, 7" % (sWO, sH))
    s("s_lshl_b32 s15, %s, 4" % sW)
    s("s_add_u32 %s, %s, s15" % (sWO, sWO))
    s("s_mul_i32 %s, %s, 1280" % (sWO, sWO))
    s("s_mov_b32 s64, 0xcccccccc"); s("s_mov_b32 s65, 0xcccccccc")
    s("s_mov_b32 s66, 0xaaaaaaaa"); s("s_mov_b32 s67, 0xaaaaaaaa")
    v("v_mul_u32_u24 v71, 1280, v62")
    v("v_add_u32 %s, v71, v68" % vWO)
    v("v_and_b32 v71, 1, v63")
    v("v_lshlrev_b32 v71, 4, v71")
    v("v_mov_b32 v72, 0xffff")
    v("v_lshlrev_b32 v71, v71, v72")
    v("v_lshrrev_b32 v72, 1, v63")
    for w in range(4):
        v("v_cmp_eq_u32 vcc, %d, v72" % w)
        v("v_cndmask_b32_e32 v%d, 0, v71, vcc" % MASK[w])
    v("v_lshlrev_b32 v71, 5, v63")
    v("v_lshl_add_u32 v71, v62, 4, v71")
    s("s_lshl_b32 s15, %s, 9" % sW)
    v("v_add_u32 v%d, s15, v71" % vLdsW)
    v("v_mov_b32 v%d, 0x%08x" % (vC, f2u(math.log2(math.e)/math.sqrt(128.0))))
    e.wait_vm("x1")
    v("v_lshl_or_b32 v%d, v%d, 16, v%d" % (XP, XP, XP))
    v("v_lshl_or_b32 v%d, v%d, 16, v%d" % (XP+1, XP+1, XP+1))
    def buildA(buf, src, lane):
        for w in range(4):
            v("v_and_b32_dpp v%d, v%d, v%d row_newbcast:%d row_mask:0xf bank_mask:0xf" % (AOP[buf]+w, src, MASK[w], lane))
    buildA(0, XP, 0)
    for j in range(20):
        if j+1 < 20: buildA((j+1) & 1, XP + (j+1)//16, (j+1) % 16)
        e.wait_vm("wq%d" % j)
        v("v_mfma_f32_16x16x32_bf16 %s, %s, %s, %s" % (rng(ACC, 4), rng(AOP[j & 1], 4), wreg(j), rng(ACC, 4) if j else "0"))
    s("s_mov_b32 exec_hi, 0")
    ds("ds_write_b128 v%d, %s offset:%d" % (vLdsW, rng(ACC, 4), LDS_Q))
    s("s_mov_b64 exec, -1")
    v("v_lshlrev_b32 v71, 5, v63")
    s("s_waitcnt lgkmcnt(0)")
    s("s_barrier")
    for u in range(8):
        ds("ds_read_b128 %s, v71 offset:%d" % (rng(WR+8*u, 4), LDS_Q + u*512))
        ds("ds_read_b128 %s, v71 offset:%d" % (rng(WR+8*u+4, 4), LDS_Q + u*512 + 16))
    v("v_mov_b32 v72, 1")
    v("v_mov_b32 v73, 0x40000000")
    v("v_cmp_eq_u32 vcc, 0, v0")
    v("v_cndmask_b32_e32 v73, v73, v0, vcc")
    s("s_lshr_b32 s15, s71, 30")
    s("s_lshl_b32 s15, s15, 30")
    e.vm_op("buffer_atomic_add v72, v73, %s, s15 offen sc1" % DBG_, r=["v72", "v73", DBG_, "s15"], tag="sig")
    for u in range(1, 8):
        s("s_waitcnt lgkmcnt(%d)" % (14 - 2*u))
        for k in range(0, 8, 2):
            v("v_pk_add_f32 %s, %s, %s" % (rng(WR+k, 2), rng(WR+k, 2), rng(WR+8*u+k, 2)))
    for k in range(4):
        v("v_cvt_pk_bf16_f32 v%d, v%d, v%d" % (Q+k, WR+2*k, WR+2*k+1))
    stamp(2)
    pend = []
    def lvlA(n):
        i = n % 16; T = n//16
        d = Pa + ((i >> 1) & 1)
        v("v_add_f32_dpp v%d, v%d, v%d row_ror:8 row_mask:0xf bank_mask:0x3" % (d, Pp+(n-1) % 4, Pp+(n-1) % 4))
        v("v_add_f32_dpp v%d, v%d, v%d row_ror:8 row_mask:0xf bank_mask:0xc" % (d, Pp+n % 4, Pp+n % 4))
        if i % 4 == 3: pend.append(lambda: lvlB(n))
    def lvlB(n):
        i = n % 16
        d = Pb + ((i >> 2) & 1)
        v("v_add_f32_dpp v%d, v%d, v%d row_half_mirror row_mask:0xf bank_mask:0x5" % (d, Pa, Pa))
        v("v_add_f32_dpp v%d, v%d, v%d row_half_mirror row_mask:0xf bank_mask:0xa" % (d, Pa+1, Pa+1))
        if i % 8 == 7: pend.append(lambda: lvlC(n))
    def lvlC(n):
        i = n % 16
        d = Pc + ((i >> 3) & 1)
        v("v_add_f32_dpp v%d, v%d, v%d quad_perm:[2,3,0,1] row_mask:0xf bank_mask:0xf" % (Pt, Pb, Pb))
        v("v_add_f32_dpp v%d, v%d, v%d quad_perm:[2,3,0,1] row_mask:0xf bank_mask:0xf" % (Pt+1, Pb+1, Pb+1))
        v("v_cndmask_b32_e64 v%d, v%d, v%d, %s" % (d, Pt, Pt+1, mB1))
        if i == 15: pend.append(lambda: lvlD(n))
    def lvlD(n):
        T = n//16
        v("v_add_f32_dpp v%d, v%d, v%d quad_perm:[1,0,3,2] row_mask:0xf bank_mask:0xf" % (Pt, Pc, Pc))
        v("v_add_f32_dpp v%d, v%d, v%d quad_perm:[1,0,3,2] row_mask:0xf bank_mask:0xf" % (Pt+1, Pc+1, Pc+1))
        v("v_cndmask_b32_e64 v%d, v%d, v%d, %s" % (S+T, Pt, Pt+1, mB0))
    wo_next = [0]
    def issue_wo():
        j = wo_next[0]
        if j >= 20: return
        wo_next[0] += 1
        jj, ct = j//5, j % 5
        e.load("buffer_load_dwordx4", wreg(j), vWO, WO_, sWO, ct*256, woflags, tag="wo%d" % j)
        if ct == 4: s("s_add_u32 %s, %s, %d" % (sWO, sWO, 4*1280))
    for n in range(128):
        e.wait_vm("kv%d" % n)
        base = RING + 4*(n % R)
        p = Pp + n % 4
        v("v_dot2_f32_bf16 v%d, v%d, v%d, 0" % (p, base, Q))
        for k in range(1, 4):
            v("v_dot2_f32_bf16 v%d, v%d, v%d, v%d" % (p, base+k, Q+k, p))
        if issued[0] < n + 1 + Ds: issue_kv()
        if n >= wo_start and (n - wo_start) % wo_step == 0: issue_wo()
        if pend: pend.pop(0)()
        if n % 2 == 1: pend.append(lambda n=n: lvlA(n))
    while pend: pend.pop(0)()
    while wo_next[0] < 20: issue_wo()
    stamp(3)
    t0 = vT
    v("v_max3_f32 v%d, v%d, v%d, v%d" % (t0, S, S+1, S+2))
    v("v_max3_f32 v%d, v%d, v%d, v%d" % (t0+1, S+3, S+4, S+5))
    v("v_max3_f32 v%d, v%d, v%d, v%d" % (t0, t0, S+6, S+7))
    v("v_max_f32 v%d, v%d, v%d" % (t0, t0, t0+1))
    def wave_reduce(op, r, dst):
        for sh in (8, 4, 2, 1):
            v("%s_dpp v%d, v%d, v%d row_ror:%d row_mask:0xf bank_mask:0xf" % (op, r, r, r, sh))
        v("%s_dpp v%d, v%d, v%d row_bcast:15 row_mask:0xa bank_mask:0xf" % (op, r, r, r))
        v("%s_dpp v%d, v%d, v%d row_bcast:31 row_mask:0xc bank_mask:0xf" % (op, r, r, r))
        v("v_readlane_b32 %s, v%d, 63" % (dst, r))
    wave_reduce("v_max_f32", t0, sM)
    v("v_mul_f32 v%d, %s, v%d" % (t0+2, sM, vC))
    for T in range(8):
        v("v_fma_f32 v%d, v%d, v%d, -v%d" % (S+T, S+T, vC, t0+2))
    for T in range(8):
        v("v_exp_f32 v%d, v%d" % (S+T, S+T))
    v("v_add_f32 v%d, v%d, v%d" % (t0, S, S+1))
    for T in range(2, 8):
        v("v_add_f32 v%d, v%d, v%d" % (t0, t0, S+T))
    for T in range(8):
        v("v_cvt_pk_bf16_f32 v%d, v%d, v%d" % (S+T, S+T, S+T))
    wave_reduce("v_add_f32", t0, sL)
    v("v_mov_b32 v%d, %s" % (t0+3, sL))
    s("s_lshl_b32 s15, %s, 3" % sW)
    v("v_mov_b32 v%d, s15" % t0)
    s("s_mov_b64 exec, 1")
    ds("ds_write_b64 v%d, %s offset:%d" % (t0, rng(t0+2, 2), LDS_ML))
    s("s_mov_b64 exec, -1")
    buildA(0, S, bitrev4(0))
    for n in range(128):
        e.wait_vm("kv%d" % (128+n))
        v("v_mfma_f32_16x16x32_bf16 %s, %s, %s, %s" % (rng(ACC, 4), rng(AOP[n & 1], 4), slot(128+n), rng(ACC, 4) if n else "0"))
        if n+1 < 128: buildA((n+1) & 1, S + (n+1)//16, bitrev4((n+1) % 16))
        issue_kv()
        if n == 64:
            v("v_mov_b32 v%d, 0" % vOff)
            e.load("buffer_load_dword", "v%d" % vChk, "v%d" % vOff, DBG_, "0", 0, "sc1", tag="chk")
        if n == 100:
            v("v_and_b32 v%d, 3, v63" % t0)
            v("v_lshl_add_u32 v%d, v%d, 2, v62" % (t0, t0))
            v("v_lshlrev_b32 v%d, 2, v%d" % (t0, t0))
            s("s_lshl_b32 s15, %s, 6" % sW)
            v("v_add_u32 v%d, s15, v%d" % (t0, t0))
            v("v_mov_b32 v%d, 0" % (t0+1))
            s("s_mul_i32 s15, %s, %d" % (sW, 2560-512))
            v("v_add_u32 v%d, s15, v%d" % (t0+2, vLdsW))
            v("v_lshlrev_b32 v%d, 4, v0" % (t0+3))
            v("v_lshrrev_b32 v%d, 3, v0" % (t0+4))
            v("v_lshlrev_b32 v%d, 12, v%d" % (t0+4, t0+4))
            v("v_and_b32 v%d, 7, v0" % (t0+5))
            v("v_lshl_add_u32 v%d, v%d, 4, v%d" % (t0+4, t0+5, t0+4))
            s("s_mul_i32 s72, %s, %d" % (sG, 20*4096))
            s("s_lshl_b32 s15, %s, 7" % sH)
            s("s_add_u32 s72, s72, s15")
    stamp(4)
    s("s_mov_b32 exec_hi, 0")
    ds("ds_write_b128 v%d, %s offset:%d" % (vLdsW, rng(ACC, 4), LDS_O))
    s("s_mov_b64 exec, -1")
    s("s_waitcnt lgkmcnt(0)")
    s("s_barrier")
    ML = RING
    OP = RING + 16
    E = RING + 24
    for k in range(4):
        ds("ds_read_b128 %s, v%d offset:%d" % (rng(ML+4*k, 4), t0+1, LDS_ML + 16*k))
    for u in range(8):
        ds("ds_read_b32 v%d, v%d offset:%d" % (OP+u, t0, LDS_O + u*512))
    s("s_waitcnt lgkmcnt(8)")
    M = RING + 32
    v("v_max3_f32 v%d, v%d, v%d, v%d" % (M, ML, ML+2, ML+4))
    v("v_max3_f32 v%d, v%d, v%d, v%d" % (M+1, ML+6, ML+8, ML+10))
    v("v_max3_f32 v%d, v%d, v%d, v%d" % (M, M, ML+12, ML+14))
    v("v_max_f32 v%d, v%d, v%d" % (M, M, M+1))
    for u in range(8): v("v_sub_f32 v%d, v%d, v%d" % (E+u, ML+2*u, M))
    for u in range(8): v("v_exp_f32 v%d, v%d" % (E+u, E+u))
    v("v_mul_f32 v%d, v%d, v%d" % (M, E, ML+1))
    for u in range(1, 8): v("v_fmac_f32 v%d, v%d, v%d" % (M, E+u, ML+2*u+1))
    v("v_rcp_f32 v%d, v%d" % (M, M))
    s("s_waitcnt lgkmcnt(0)")
    v("v_mul_f32 v%d, v%d, v%d" % (M+1, E, OP))
    for u in range(1, 8): v("v_fmac_f32 v%d, v%d, v%d" % (M+1, E+u, OP+u))
    v("v_mul_f32 v%d, v%d, v%d" % (M+1, M+1, M))
    v("v_cvt_pk_bf16_f32 v%d, v%d, v%d" % (M+1, M+1, M+1))
    buildA(0, M+1, 0)
    for jj in range(4):
        if jj+1 < 4: buildA((jj+1) & 1, M+1, jj+1)
        for ct in range(5):
            a = rng(ACO+4*ct, 4)
            v("v_mfma_f32_16x16x32_bf16 %s, %s, %s, %s" % (a, rng(AOP[jj & 1], 4), wreg(jj*5+ct), a if jj else "0"))
    s("s_mov_b32 exec_hi, 0")
    for ct in range(5):
        ds("ds_write_b128 v%d, %s offset:%d" % (t0+2, rng(ACO+4*ct, 4), LDS_R + ct*512))
    s("s_mov_b64 exec, -1")
    s("s_waitcnt lgkmcnt(0)")
    s("s_barrier")
    stamp(5)
    s("s_cmp_ge_u32 %s, 3" % sW)
    s("s_cbranch_scc1 L_consumer")
    v("v_cmp_gt_u32 vcc, 160, v0")
    s("s_and_saveexec_b64 s[74:75], vcc")
    for u in range(8):
        ds("ds_read_b128 %s, v%d offset:%d" % (rng(RING+4*u, 4), t0+3, LDS_R + u*2560))
    v("v_readfirstlane_b32 s15, v%d" % vChk)
    s("s_mov_b32 s73, 0")
    e.label("L_chk")
    s("s_cmp_ge_u32 s15, 160")
    s("s_cbranch_scc1 L_chk_ok")
    s("s_add_u32 s73, s73, 1")
    s("s_cmp_ge_u32 s73, 0x40000")
    s("s_cbranch_scc1 L_chk_ok")
    s("s_sleep 4")
    e.ins("buffer_load_dword v%d, v%d, %s, 0 offen sc1" % (vChk, vOff, DBG_), w=["v%d" % vChk], r=["v%d" % vOff], kind='vmem')
    s("s_waitcnt vmcnt(0)")
    v("v_readfirstlane_b32 s15, v%d" % vChk)
    s("s_branch L_chk")
    e.label("L_chk_ok")
    for u in range(1, 8):
        s("s_waitcnt lgkmcnt(%d)" % (7-u))
        v("v_pk_add_f32 %s, %s, %s" % (rng(RING, 2), rng(RING, 2), rng(RING+4*u, 2)))
        v("v_pk_add_f32 %s, %s, %s" % (rng(RING+2, 2), rng(RING+2, 2), rng(RING+4*u+2, 2)))
    for k in range(4):
        v("v_min_u32 v%d, -2, v%d" % (RING+k, RING+k))
    e.ins("buffer_store_dwordx4 %s, v%d, %s, s72 offen sc1" % (rng(RING, 4), t0+4, WS_), r=[rng(RING, 4), "v%d" % (t0+4), "s72"], kind='vmem')
    if stamps:
        s("s_waitcnt vmcnt(0)")
        stamp(6)
        s("s_branch L_stamps")
    s("s_endpgm")
    e.fence()
    e.label("L_consumer")
    s("s_cmp_lg_u32 %s, 3" % sW)
    s("s_cbranch_scc1 L_done")
    s("s_cmp_ge_u32 %s, 20" % sH)
    s("s_cbranch_scc1 L_done")
    s("s_mov_b32 s73, 0")
    e.label("L_poll")
    for k in range(4):
        e.ins("buffer_load_dwordx4 %s, %s, %s, s71 offen offset:%d sc1" % (rng(RING+4*k, 4), vLane16, WS_, k*1024), w=[rng(RING+4*k, 4)], r=[vLane16, "s71"], kind='vmem')
    s("s_waitcnt vmcnt(0)")
    v("v_max3_u32 v%d, v%d, v%d, v%d" % (t0, RING, RING+1, RING+2))
    for k in range(3, 15, 2):
        v("v_max3_u32 v%d, v%d, v%d, v%d" % (t0, t0, RING+k, RING+k+1))
    v("v_max_u32 v%d, v%d, v%d" % (t0, t0, RING+15))
    v("v_cmp_eq_u32 vcc, -1, v%d" % t0)
    s("s_add_u32 s73, s73, 1")
    s("s_cmp_ge_u32 s73, 0x40000")
    s("s_cbranch_scc1 L_poll_ok")
    e.ins("s_cbranch_vccz L_poll_ok", r=["vcc"], kind='salu')
    s("s_sleep 2")
    s("s_branch L_poll")
    e.label("L_poll_ok")
    for k in range(1, 4):
        v("v_pk_add_f32 %s, %s, %s" % (rng(RING, 2), rng(RING, 2), rng(RING+4*k, 2)))
        v("v_pk_add_f32 %s, %s, %s" % (rng(RING+2, 2), rng(RING+2, 2), rng(RING+4*k+2, 2)))
    for k in range(4):
        v("v_add_f32_dpp v%d, v%d, v%d row_ror:8 row_mask:0xf bank_mask:0xf" % (RING+k, RING+k, RING+k))
    for sw in ("v_permlane16_swap_b32", "v_permlane32_swap_b32"):
        for k in range(4): v("v_mov_b32 v%d, v%d" % (RING+4+k, RING+k))
        for k in range(4): v("%s v%d, v%d" % (sw, RING+k, RING+4+k))
        for k in range(4): v("v_add_f32 v%d, v%d, v%d" % (RING+k, RING+k, RING+4+k))
    v("v_cvt_pk_bf16_f32 v%d, v%d, v%d" % (RING, RING, RING+1))
    v("v_cvt_pk_bf16_f32 v%d, v%d, v%d" % (RING+1, RING+2, RING+3))
    v("v_lshrrev_b32 v%d, 1, %s" % (t0, vLane16))
    s("s_mul_i32 s15, %s, 2560" % sB)
    s("s_mul_i32 s14, %s, 1280" % sBR)
    s("s_add_u32 s15, s15, s14")
    s("s_lshl_b32 s14, %s, 6" % sH)
    s("s_add_u32 s15, s15, s14")
    s("s_mov_b64 exec, 0xff")
    e.ins("buffer_store_dwordx2 %s, v%d, %s, s15 offen" % (rng(RING, 2), t0, OUT_), r=[rng(RING, 2), "v%d" % t0, "s15"], kind='vmem')
    if stamps:
        s("s_waitcnt vmcnt(0)")
        stamp(6)
        e.label("L_stamps")
        s("s_waitcnt lgkmcnt(0)")
        s("s_cmp_eq_u32 %s, 3" % sW)
        s("s_cselect_b32 s15, 1, 0")
        s("s_cmp_eq_u32 %s, 0" % sW)
        s("s_cselect_b32 s14, 1, s15")
        s("s_cmp_eq_u32 s14, 0")
        s("s_cbranch_scc1 L_done")
        s("s_lshl_b32 s14, s2, 1")
        s("s_add_u32 s14, s14, s15")
        s("s_lshl_b32 s14, s14, 6")
        s("s_add_u32 s14, s14, %d" % (160*4096))
        s("s_getreg_b32 s94, hwreg(HW_REG_XCC_ID)")
        s("s_mov_b64 exec, 1")
        v("v_mov_b32 v%d, 0" % t0)
        for k in range(8):
            v("v_mov_b32 v%d, s%d" % (RING+k, 80+2*k))
        e.ins("buffer_store_dwordx4 %s, v%d, %s, s14 offen" % (rng(RING, 4), t0, WS_), r=[rng(RING, 4), "v%d" % t0], kind='vmem')
        e.ins("buffer_store_dwordx4 %s, v%d, %s, s14 offen offset:16" % (rng(RING+4, 4), t0, WS_), r=[rng(RING+4, 4), "v%d" % t0], kind='vmem')
        if dbgst:
            v("v_not_b32 v%d, v%d" % (RING+8, RING))
            e.ins("buffer_atomic_umax v%d, v%d, %s, 0 offen offset:16 sc1" % (RING+8, t0, DBG_), r=["v%d" % (RING+8)], kind='vmem')
            for k in range(7):
                e.ins("buffer_atomic_umax v%d, v%d, %s, 0 offen offset:%d sc1" % (RING+k, t0, DBG_, 20+4*k), r=["v%d" % (RING+k)], kind='vmem')
    e.label("L_done")
    s("s_endpgm")
    nv = (NV+7)//8*8
    tail = ['.section .rodata,"a"', ".p2align 6", ".amdhsa_kernel %s" % name,
            "  .amdhsa_next_free_vgpr %d" % nv, "  .amdhsa_next_free_sgpr 96", "  .amdhsa_accum_offset %d" % nv,
            "  .amdhsa_group_segment_fixed_size 0", "  .amdhsa_kernarg_size 104", "  .amdhsa_user_sgpr_count 2",
            "  .amdhsa_user_sgpr_kernarg_segment_ptr 1", "  .amdhsa_system_sgpr_workgroup_id_x 1", ".end_amdhsa_kernel"]
    return "\n".join(hdr) + "\n" + e.text() + "\n".join(tail) + "\n"
import struct
def f2u(x): return struct.unpack("<I", struct.pack("<f", x))[0]
STAMP_OFF = 160*4096
def report(stm):
    import numpy as np
    rows = []
    for st in stm:
        w0 = st[:, 0, :]; t0 = w0[:, 0].min()
        cons = [g for g in range(256) if (g & 31) < 20]
        fin = (st[cons, 1, 6] - t0).max()/100
        d = (w0[:, :7] - t0)/100
        rows.append([d[:, 0].max(), np.median(d[:, 1]), np.median(d[:, 2]), d[:, 2].max(), np.median(d[:, 3]), d[:, 3].max(), d[:, 4].min(), d[:, 4].mean(), d[:, 4].max(), d[:, 5].max(), np.median(d[:, 5]-d[:, 4]), d[:, 6].max(), fin])
    r = np.round(np.median(np.array(rows), axis=0), 2)
    print("   lastStart %.2f | issued med %.2f | q-ready med %.2f max %.2f | Kdone med %.2f max %.2f | Vdone(w0) min %.2f mean %.2f max %.2f | outproj done max %.2f (med dur %.2f) | published max %.2f | final %.2f" % tuple(r))
    st = stm[-1]; xcc = st[:, 0, 7] & 7; t0 = st[:, 0, 0].min()
    print("   xcd mean Vdone:", [round(float(((st[xcc == x, 0, 4]-t0)/100).mean()), 1) for x in range(8)])
if __name__ == "__main__":
    cfg = json.loads(sys.argv[2]) if len(sys.argv) > 2 else {}
    open(sys.argv[1], "w").write(gen(**cfg))
```

```python
import sys, math, json, struct
from asmlib import Em
NAME = "concat_heads__mha_block_cached__gqa_block_cached__decode_kernel"
def f2u(x): return struct.unpack("<I", struct.pack("<f", x))[0]
def bitrev4(i): return ((i & 1) << 3) | ((i & 2) << 1) | ((i & 4) >> 1) | ((i & 8) >> 3)
INBOX = 160*4096
EPOCH_OFF = INBOX
STAMP_OFF = INBOX + 4096
NSTAMP = 8

def gen(D=(5,), xoff=0, kvflags="nt", wqflags="nt", woflags="nt", wqD=40, woD=4, stamps=False, pollsleep=2, wmap=0, name=NAME):
    if isinstance(D, int): D = (D,)
    e = Em()
    s, v, ds = e.s, e.v, e.ds
    LDS_Q, LDS_O, LDS_ML, LDS_R = 0, 2048, 4096, 4352
    LDS_BYTES = LDS_R + 4*2560
    hdr = []
    hdr.append("; @launch grid=(256,1,1) block=(512,1,1) lds=%d" % LDS_BYTES)
    hdr.append('.amdgcn_target "amdgcn-amd-amdhsa--gfx950"')
    hdr.append(".text\n.globl %s\n.p2align 8\n.type %s,@function\n%s:" % (name, name, name))
    KV_, WQ_, WO_, X_, WS_, OUT_ = "s[24:27]", "s[32:35]", "s[36:39]", "s[40:43]", "s[44:47]", "s[52:55]"
    sW, sH, sB, sBR, sK, sT, sG, sCnt = "s56", "s57", "s58", "s59", "s60", "s61", "s62", "s63"
    mB1, mB0 = "s[64:65]", "s[66:67]"
    sM, sL, sWO, sIn, sPub, sIt, sTag = "s68", "s69", "s70", "s71", "s72", "s73", "s76"
    sVlo, sVhi = "s28", "s29"
    vLane16, vG, vCc = "v1", "v2", "v3"
    MASK = [4, 5, 6, 7]
    AOP = [8, 12]
    vLdsW = 16
    T = 17
    def rng(a, n): return "v[%d:%d]" % (a, a+n-1)
    def stamp(k):
        if stamps: s("s_memrealtime s[%d:%d]" % (80+2*k, 81+2*k))
    def buildA(buf, src, lane):
        for w in range(4):
            v("v_and_b32_dpp v%d, v%d, v%d row_newbcast:%d row_mask:0xf bank_mask:0xf" % (AOP[buf]+w, src, MASK[w], lane))
    def make_masks():
        v("v_and_b32 v%d, 1, %s" % (T, vCc))
        v("v_lshlrev_b32 v%d, 4, v%d" % (T, T))
        v("v_mov_b32 v%d, 0xffff" % (T+1))
        v("v_lshlrev_b32 v%d, v%d, v%d" % (T, T, T+1))
        v("v_lshrrev_b32 v%d, 1, %s" % (T+1, vCc))
        for w in range(4):
            v("v_cmp_eq_u32 vcc, %d, v%d" % (w, T+1))
            v("v_cndmask_b32_e32 v%d, 0, v%d, vcc" % (MASK[w], T))
        v("v_lshlrev_b32 v%d, 5, %s" % (T, vCc))
        v("v_lshl_add_u32 v%d, %s, 4, v%d" % (T, vG, T))
        s("s_and_b32 s15, %s, 3" % sW)
        s("s_lshl_b32 s15, s15, 9")
        v("v_add_u32 v%d, s15, v%d" % (vLdsW, T))
    s("s_cmp_ge_u32 s2, 256")
    s("s_cbranch_scc1 L_done")
    stamp(0)
    if wmap == 0:
        s("s_mov_b32 s18, s2")
    else:
        s("s_and_b32 s14, s2, 7")
        s("s_bfe_u32 s15, s2, 0x30003")
        s("s_lshr_b32 s19, s2, 6")
        if wmap == 1:
            s("s_lshr_b32 s18, s14, 2"); s("s_lshl_b32 s18, s18, 7")
            s("s_and_b32 s14, s14, 3"); s("s_lshl_b32 s14, s14, 3"); s("s_add_u32 s18, s18, s14"); s("s_add_u32 s18, s18, s15")
        elif wmap == 2:
            s("s_and_b32 s18, s14, 1"); s("s_lshl_b32 s18, s18, 7")
            s("s_lshr_b32 s14, s14, 1"); s("s_lshl_b32 s14, s14, 3"); s("s_add_u32 s18, s18, s14"); s("s_add_u32 s18, s18, s15")
        elif wmap == 3:
            s("s_add_u32 s14, s14, s15"); s("s_and_b32 s14, s14, 7")
            s("s_lshr_b32 s18, s15, 2"); s("s_lshl_b32 s18, s18, 7"); s("s_add_u32 s18, s18, s14")
            s("s_and_b32 s15, s15, 3"); s("s_lshl_b32 s15, s15, 3"); s("s_add_u32 s18, s18, s15")
        s("s_lshl_b32 s19, s19, 5"); s("s_add_u32 s18, s18, s19")
    s("s_lshr_b32 %s, s18, 7" % sBR)
    s("s_mul_i32 s3, %s, 40" % sBR)
    s("s_load_dwordx8 s[4:11], s[0:1], s3")
    s("s_add_u32 s3, s3, 32")
    s("s_load_dwordx2 s[12:13], s[0:1], s3")
    s("s_load_dwordx2 s[16:17], s[0:1], 80")
    s("s_load_dwordx2 s[20:21], s[0:1], 96")
    v("v_lshrrev_b32 v%d, 6, v0" % T)
    v("v_and_b32 v%d, 63, v0" % (T+1))
    v("v_readfirstlane_b32 %s, v%d" % (sW, T))
    v("v_lshlrev_b32 %s, 4, v%d" % (vLane16, T+1))
    v("v_lshrrev_b32 %s, 4, v%d" % (vG, T+1))
    v("v_and_b32 %s, 15, v0" % vCc)
    s("s_and_b32 %s, s18, 31" % sH)
    s("s_lshr_b32 %s, s18, 5" % sG)
    s("s_and_b32 %s, %s, 3" % (sB, sG))
    s("s_mov_b32 s46, 0x%x" % (STAMP_OFF + 256*2*64))
    s("s_mov_b32 s47, 0x20000")
    s("s_cmp_ge_u32 %s, 4" % sW)
    s("s_cbranch_scc1 L_helper")
    Q, S, Pp, Pa, Pb, Pc, Pt, ACC, vC = 28, 32, 48, 52, 54, 56, 58, 60, 27
    RING, R = 64, 32
    s("s_and_b32 s14, s18, 127")
    s("s_lshl_b32 s14, s14, 20")
    s("s_mov_b32 s26, 0x100000")
    s("s_mov_b32 s27, 0x20000")
    s("s_lshl_b32 %s, %s, 12" % (sK, sW))
    if xoff:
        s("s_and_b32 s15, s2, 7")
        s("s_mul_i32 s15, s15, %d" % (xoff*4096))
        s("s_add_u32 %s, %s, s15" % (sK, sK))
    s("s_mov_b32 %s, 0" % sCnt)
    s("s_waitcnt lgkmcnt(0)")
    s("s_add_u32 s24, s6, s14"); s("s_addc_u32 s25, s7, 0")
    slot_of = lambda n: n % 32 if n < 56 else 16 + (n - 48) % 16
    def slot(n): return rng(RING + 4*slot_of(n), 4)
    issued = [0]
    def issue_kv(pace=True):
        m = issued[0]; issued[0] += 1
        d = D[m % len(D)]
        if pace and m - d >= 0: e.wait_vm("kv%d" % (m - d))
        e.load("buffer_load_dwordx4", slot(m), vLane16, KV_, sK, (m % 4)*1024, kvflags, tag="kv%d" % m)
        if m % 4 == 3:
            s("s_add_u32 %s, %s, 0x4000" % (sK, sK))
            s("s_and_b32 %s, %s, 0xfffff" % (sK, sK))
            if m >= 48:
                s("s_add_u32 %s, %s, 1" % (sCnt, sCnt))
                s("s_cmp_eq_u32 %s, %d" % (sCnt, 64 - 12))
                s("s_cselect_b32 s24, %s, s24" % sVlo)
                s("s_cselect_b32 s25, %s, s25" % sVhi)
    for m in range(max(D)): issue_kv()
    stamp(1)
    s("s_add_u32 %s, s8, s14" % sVlo); s("s_addc_u32 %s, s9, 0" % sVhi)
    s("s_mov_b32 s44, s20"); s("s_mov_b32 s45, s21")
    s("s_lshl_b32 s78, %s, 7" % sG)
    s("s_add_u32 s78, s78, %d" % EPOCH_OFF)
    s("s_load_dword %s, s[20:21], s78" % sTag)
    s("s_mov_b32 s64, 0xcccccccc"); s("s_mov_b32 s65, 0xcccccccc")
    s("s_mov_b32 s66, 0xaaaaaaaa"); s("s_mov_b32 s67, 0xaaaaaaaa")
    make_masks()
    v("v_mov_b32 v%d, 0x%08x" % (vC, f2u(math.log2(math.e)/math.sqrt(128.0))))
    v("v_lshlrev_b32 v%d, 5, %s" % (T, vCc))
    while issued[0] < R - 2: issue_kv()
    s("s_barrier")
    QT = S
    for u in range(4):
        ds("ds_read_b128 %s, v%d offset:%d" % (rng(QT+8*u, 4), T, LDS_Q + u*512))
        ds("ds_read_b128 %s, v%d offset:%d" % (rng(QT+8*u+4, 4), T, LDS_Q + u*512 + 16))
    issue_kv()
    for u in range(1, 4):
        s("s_waitcnt lgkmcnt(%d)" % (6 - 2*u))
        for k in range(0, 8, 2):
            v("v_pk_add_f32 %s, %s, %s" % (rng(QT+k, 2), rng(QT+k, 2), rng(QT+8*u+k, 2)))
    issue_kv()
    for k in range(4):
        v("v_cvt_pk_bf16_f32 v%d, v%d, v%d" % (Q+k, QT+2*k, QT+2*k+1))
    stamp(2)
    pend = []
    def lvlA(n):
        i = n % 16
        d = Pa + ((i >> 1) & 1)
        v("v_add_f32_dpp v%d, v%d, v%d row_ror:8 row_mask:0xf bank_mask:0x3" % (d, Pp+(n-1) % 4, Pp+(n-1) % 4))
        v("v_add_f32_dpp v%d, v%d, v%d row_ror:8 row_mask:0xf bank_mask:0xc" % (d, Pp+n % 4, Pp+n % 4))
        if i % 4 == 3: pend.append(("B", n))
    def lvlB(n):
        i = n % 16
        d = Pb + ((i >> 2) & 1)
        v("v_add_f32_dpp v%d, v%d, v%d row_half_mirror row_mask:0xf bank_mask:0x5" % (d, Pa, Pa))
        v("v_add_f32_dpp v%d, v%d, v%d row_half_mirror row_mask:0xf bank_mask:0xa" % (d, Pa+1, Pa+1))
        if i % 8 == 7: pend.append(("C", n))
    def lvlC(n):
        i = n % 16
        d = Pc + ((i >> 3) & 1)
        v("v_add_f32_dpp v%d, v%d, v%d quad_perm:[2,3,0,1] row_mask:0xf bank_mask:0xf" % (Pt, Pb, Pb))
        v("v_add_f32_dpp v%d, v%d, v%d quad_perm:[2,3,0,1] row_mask:0xf bank_mask:0xf" % (Pt+1, Pb+1, Pb+1))
        v("v_cndmask_b32_e64 v%d, v%d, v%d, %s" % (d, Pt, Pt+1, mB1))
        if i == 15: pend.append(("D", n))
    def lvlD(n):
        v("v_add_f32_dpp v%d, v%d, v%d quad_perm:[1,0,3,2] row_mask:0xf bank_mask:0xf" % (Pt, Pc, Pc))
        v("v_add_f32_dpp v%d, v%d, v%d quad_perm:[1,0,3,2] row_mask:0xf bank_mask:0xf" % (Pt+1, Pc+1, Pc+1))
        for k in range(15): v("v_mov_b32 v%d, v%d" % (S+k, S+k+1))
        v("v_cndmask_b32_e64 v%d, v%d, v%d, %s" % (S+15, Pt, Pt+1, mB0))
    def run_pend():
        k, n = pend.pop(0)
        {"A": lvlA, "B": lvlB, "C": lvlC, "D": lvlD}[k](n)
    def kstep(n, do_issue):
        if do_issue: issue_kv()
        e.wait_vm("kv%d" % n)
        base = RING + 4*slot_of(n)
        p = Pp + n % 4
        v("v_dot2_f32_bf16 v%d, v%d, v%d, 0" % (p, base, Q))
        for k in range(1, 4):
            v("v_dot2_f32_bf16 v%d, v%d, v%d, v%d" % (p, base+k, Q+k, p))
        if pend: run_pend()
        if n % 2 == 1: pend.append(("A", n))
    for n in range(48): kstep(n, n % 2 == 1)
    assert issued[0] == 56
    st0 = [(k, n % 16) for k, n in pend]
    s("s_mov_b32 %s, 13" % sIt)
    e.fence()
    e.label("L_kloop")
    for n in range(48, 64): kstep(n, True)
    assert st0 == [(k, n % 16) for k, n in pend]
    s("s_sub_u32 %s, %s, 1" % (sIt, sIt))
    s("s_cmp_lg_u32 %s, 0" % sIt)
    e.fence()
    s("s_cbranch_scc1 L_kloop")
    issue_kv()
    while pend: run_pend()
    stamp(3)
    v("v_max3_f32 v%d, v%d, v%d, v%d" % (T, S, S+1, S+2))
    for k in range(3, 15, 2):
        v("v_max3_f32 v%d, v%d, v%d, v%d" % (T, T, S+k, S+k+1))
    v("v_max_f32 v%d, v%d, v%d" % (T, T, S+15))
    def wave_reduce(op, r, dst):
        for sh in (8, 4, 2, 1):
            v("%s_dpp v%d, v%d, v%d row_ror:%d row_mask:0xf bank_mask:0xf" % (op, r, r, r, sh))
        v("%s_dpp v%d, v%d, v%d row_bcast:15 row_mask:0xa bank_mask:0xf" % (op, r, r, r))
        v("%s_dpp v%d, v%d, v%d row_bcast:31 row_mask:0xc bank_mask:0xf" % (op, r, r, r))
        v("v_readlane_b32 %s, v%d, 63" % (dst, r))
    wave_reduce("v_max_f32", T, sM)
    issue_kv()
    vM = T+3
    v("v_mul_f32 v%d, %s, v%d" % (vM, sM, vC))
    for k in range(16):
        v("v_fma_f32 v%d, v%d, v%d, -v%d" % (S+k, S+k, vC, vM))
    for k in range(16):
        v("v_exp_f32 v%d, v%d" % (S+k, S+k))
    issue_kv()
    v("v_add_f32 v%d, v%d, v%d" % (T, S, S+1))
    for k in range(2, 16):
        v("v_add_f32 v%d, v%d, v%d" % (T, T, S+k))
    for k in range(16):
        v("v_cvt_pk_bf16_f32 v%d, v%d, v%d" % (S+k, S+k, S+k))
    wave_reduce("v_add_f32", T, sL)
    issue_kv()
    v("v_mov_b32 v%d, %s" % (vM+1, sL))
    s("s_lshl_b32 s15, %s, 3" % sW)
    v("v_mov_b32 v%d, s15" % T)
    s("s_mov_b64 exec, 1")
    ds("ds_write_b64 v%d, %s offset:%d" % (T, rng(vM, 2), LDS_ML))
    s("s_mov_b64 exec, -1")
    for k in range(4): v("v_mov_b32 v%d, 0" % (ACC+k))
    buildA(0, S, bitrev4(0))
    base_n = 64
    s("s_mov_b32 %s, 15" % sIt)
    e.fence()
    def vbody(last):
        for i in range(16):
            n = base_n + i
            if issued[0] < 96: issue_kv()
            e.wait_vm("kv%d" % n)
            v("v_mfma_f32_16x16x32_bf16 %s, %s, %s, %s" % (rng(ACC, 4), rng(AOP[i & 1], 4), slot(n), rng(ACC, 4)))
            if i < 15: buildA((i+1) & 1, S, bitrev4(i+1))
            elif not last:
                buildA(0, S+1, bitrev4(0))
                for k in range(15): v("v_mov_b32 v%d, v%d" % (S+k, S+k+1))
    e.label("L_vloop")
    vbody(False)
    s("s_sub_u32 %s, %s, 1" % (sIt, sIt))
    s("s_cmp_lg_u32 %s, 0" % sIt)
    e.fence()
    s("s_cbranch_scc1 L_vloop")
    ML = Pp
    v("v_mov_b32 v%d, 0" % T)
    s("s_mov_b32 %s, 0" % sIt)
    issue_kv()
    e.label("L_ml")
    ds("ds_read_b128 %s, v%d offset:%d" % (rng(ML, 4), T, LDS_ML))
    ds("ds_read_b128 %s, v%d offset:%d" % (rng(ML+4, 4), T, LDS_ML + 16))
    s("s_waitcnt lgkmcnt(0)")
    v("v_min_u32 v%d, v%d, v%d" % (T+1, ML+1, ML+3))
    v("v_min3_u32 v%d, v%d, v%d, v%d" % (T+1, T+1, ML+5, ML+7))
    s("s_add_u32 %s, %s, 1" % (sIt, sIt))
    v("v_readfirstlane_b32 s15, v%d" % (T+1))
    s("s_cmp_ge_u32 %s, 0x100000" % sIt)
    s("s_cbranch_scc1 L_ml_ok")
    s("s_cmp_eq_u32 s15, 0")
    s("s_cbranch_scc1 L_ml")
    e.label("L_ml_ok")
    issue_kv()
    v("v_max3_f32 v%d, v%d, v%d, v%d" % (T+1, ML, ML+2, ML+4))
    v("v_max_f32 v%d, v%d, v%d" % (T+1, T+1, ML+6))
    for u in range(4): v("v_sub_f32 v%d, v%d, v%d" % (ML+2*u, ML+2*u, T+1))
    v("v_sub_f32 v%d, v%d, v%d" % (vM, vM, T+1))
    for u in range(4): v("v_exp_f32 v%d, v%d" % (ML+2*u, ML+2*u))
    v("v_exp_f32 v%d, v%d" % (vM, vM))
    v("v_mul_f32 v%d, v%d, v%d" % (T+1, ML, ML+1))
    for u in range(1, 4): v("v_fmac_f32 v%d, v%d, v%d" % (T+1, ML+2*u, ML+2*u+1))
    v("v_rcp_f32 v%d, v%d" % (T+1, T+1))
    v("v_mul_f32 v%d, v%d, v%d" % (vM, vM, T+1))
    base_n = 80
    vbody(True)
    stamp(4)
    for k in range(4): v("v_mul_f32 v%d, v%d, v%d" % (ACC+k, ACC+k, vM))
    s("s_mov_b32 exec_hi, 0")
    ds("ds_write_b128 v%d, %s offset:%d" % (vLdsW, rng(ACC, 4), LDS_O))
    s("s_mov_b64 exec, -1")
    s("s_waitcnt lgkmcnt(0)")
    s("s_barrier")
    s("s_cmp_lg_u32 %s, 0" % sW)
    s("s_cbranch_scc1 L_done")
    if not stamps:
        s("s_cmp_ge_u32 %s, 20" % sH)
        s("s_cbranch_scc1 L_done")
    s("s_mul_i32 %s, %s, 20" % (sIn, sG))
    s("s_add_u32 %s, %s, %s" % (sIn, sIn, sH))
    s("s_lshl_b32 %s, %s, 12" % (sIn, sIn))
    s("s_mov_b32 s52, s16"); s("s_mov_b32 s53, s17"); s("s_mov_b32 s54, %d" % (4*2560)); s("s_mov_b32 s55, 0x20000")
    s("s_mul_i32 s14, %s, 2560" % sB)
    s("s_mul_i32 s3, %s, 1280" % sBR)
    s("s_add_u32 s14, s14, s3")
    s("s_lshl_b32 s3, %s, 6" % sH)
    s("s_add_u32 s14, s14, s3")
    v("v_lshrrev_b32 v%d, 1, %s" % (T+2, vLane16))
    v("v_mov_b32 v%d, 0" % (T+4))
    s("s_mov_b32 %s, 0" % sIt)
    s("s_add_u32 %s, %s, 1" % (sTag, sTag))
    s("s_and_b32 s77, %s, 0xff" % sTag)
    s("s_barrier")
    if stamps:
        s("s_cmp_ge_u32 %s, 20" % sH)
        s("s_cbranch_scc1 L_stamps")
    G0 = RING
    e.label("L_poll")
    for k in range(4):
        e.ins("buffer_load_dwordx4 %s, %s, %s, %s offen offset:%d sc1" % (rng(G0+4*k, 4), vLane16, WS_, sIn, k*1024), w=[rng(G0+4*k, 4)], r=[vLane16, sIn], kind='vmem')
    s("s_waitcnt vmcnt(0)")
    for k in range(16):
        v("v_xor_b32 v%d, s77, v%d" % (G0+k, G0+k))
    v("v_or_b32 v%d, v%d, v%d" % (T, G0, G0+1))
    for k in range(2, 16, 2):
        v("v_or3_b32 v%d, v%d, v%d, v%d" % (T, T, G0+k, G0+k+1))
    v("v_and_b32 v%d, 0xff, v%d" % (T, T))
    v("v_cmp_ne_u32 vcc, 0, v%d" % T)
    s("s_add_u32 %s, %s, 1" % (sIt, sIt))
    s("s_cmp_ge_u32 %s, 0x40000" % sIt)
    s("s_cbranch_scc1 L_poll_ok")
    e.ins("s_cbranch_vccz L_poll_ok", r=["vcc"], kind='salu')
    if pollsleep: s("s_sleep %d" % pollsleep)
    s("s_branch L_poll")
    e.label("L_poll_ok")
    for k in range(1, 4):
        v("v_pk_add_f32 %s, %s, %s" % (rng(G0, 2), rng(G0, 2), rng(G0+4*k, 2)))
        v("v_pk_add_f32 %s, %s, %s" % (rng(G0+2, 2), rng(G0+2, 2), rng(G0+4*k+2, 2)))
    for k in range(4):
        v("v_add_f32_dpp v%d, v%d, v%d row_ror:8 row_mask:0xf bank_mask:0xf" % (G0+k, G0+k, G0+k))
    for sw in ("v_permlane16_swap_b32", "v_permlane32_swap_b32"):
        for k in range(4): v("v_mov_b32 v%d, v%d" % (G0+4+k, G0+k))
        for k in range(4): v("%s v%d, v%d" % (sw, G0+k, G0+4+k))
        for k in range(4): v("v_add_f32 v%d, v%d, v%d" % (G0+k, G0+k, G0+4+k))
    v("v_cvt_pk_bf16_f32 v%d, v%d, v%d" % (G0, G0, G0+1))
    v("v_cvt_pk_bf16_f32 v%d, v%d, v%d" % (G0+1, G0+2, G0+3))
    v("v_mov_b32 v%d, %s" % (T+3, sTag))
    s("s_mov_b64 exec, 0xff")
    e.ins("buffer_store_dwordx2 %s, v%d, %s, s14 offen" % (rng(G0, 2), T+2, OUT_), r=[rng(G0, 2), "v%d" % (T+2), "s14"], kind='vmem')
    s("s_cmp_lg_u32 %s, 0" % sH)
    s("s_cbranch_scc1 %s" % ("L_stamps" if stamps else "L_done"))
    s("s_mov_b64 exec, 1")
    e.ins("buffer_store_dword v%d, v%d, %s, s78 offen sc1" % (T+3, T+4, WS_), r=["v%d" % (T+3), "v%d" % (T+4), "s78"], kind='vmem')
    if stamps: s("s_branch L_stamps")
    s("s_endpgm")
    e.fence()
    e.label("L_helper")
    e.vm = []; e.vm_done = -1
    XP, ACO, WR = 28, 32, 64
    vWQ, vWO, vX = 52, 53, 54
    def wreg(j): return rng(WR + 4*j, 4)
    s("s_sub_u32 s22, %s, 4" % sW)
    s("s_mov_b32 s34, 0x%x" % (640*8192)); s("s_mov_b32 s35, 0x20000")
    s("s_mov_b32 s42, 0x%x" % (4*1280)); s("s_mov_b32 s43, 0x20000")
    v("v_lshlrev_b32 v%d, 4, %s" % (T+2, vCc))
    v("v_lshl_add_u32 v%d, %s, 13, v%d" % (vWQ, vG, T+2))
    v("v_lshl_add_u32 v%d, %s, 2, %s" % (vX, vCc, vG))
    v("v_lshlrev_b32 v%d, 1, v%d" % (vX, vX))
    s("s_mul_i32 s15, s22, %d" % (160*8192))
    s("s_lshl_b32 %s, %s, 8" % (sT, sH))
    s("s_add_u32 %s, %s, s15" % (sT, sT))
    s("s_mul_i32 s14, %s, 1280" % sB)
    s("s_mul_i32 s15, s22, 320")
    s("s_add_u32 s14, s14, s15")
    s("s_lshl_b32 s23, %s, 7" % sG)
    s("s_add_u32 s23, s23, %d" % EPOCH_OFF)
    s("s_waitcnt lgkmcnt(0)")
    s("s_mov_b32 s32, s10"); s("s_mov_b32 s33, s11")
    s("s_mov_b32 s40, s4"); s("s_mov_b32 s41, s5")
    for k in range(3):
        e.load("buffer_load_ushort", "v%d" % (XP+k), "v%d" % vX, X_, "s14", 128*k, "", tag="x%d" % k)
    wq_issued = [0]
    def issue_wq():
        j = wq_issued[0]
        if j >= 40: return
        wq_issued[0] += 1
        e.load("buffer_load_dwordx4", wreg(j), "v%d" % vWQ, WQ_, sT, 0, wqflags, tag="wq%d" % j)
        s("s_add_u32 %s, %s, 0x8000" % (sT, sT))
    for j in range(wqD): issue_wq()
    s("s_load_dword %s, s[20:21], s23" % sTag)
    s("s_mov_b32 s44, s20"); s("s_mov_b32 s45, s21")
    s("s_mov_b32 s36, s12"); s("s_mov_b32 s37, s13"); s("s_mov_b32 s38, 0x%x" % (4096*1280)); s("s_mov_b32 s39, 0x20000")
    s("s_lshl_b32 %s, %s, 7" % (sWO, sH))
    s("s_lshl_b32 s15, s22, 5")
    s("s_add_u32 %s, %s, s15" % (sWO, sWO))
    s("s_mul_i32 %s, %s, 1280" % (sWO, sWO))
    v("v_mul_u32_u24 v%d, 1280, %s" % (T, vG))
    v("v_add_u32 v%d, v%d, v%d" % (vWO, T, T+2))
    make_masks()
    v("v_mov_b32 v%d, 0" % T)
    v("v_lshlrev_b32 v%d, 2, %s" % (T+1, vCc))
    ds("ds_write_b32 v%d, v%d offset:%d" % (T+1, T, LDS_ML))
    e.wait_vm("x2")
    for k in range(3): v("v_lshl_or_b32 v%d, v%d, 16, v%d" % (XP+k, XP+k, XP+k))
    buildA(0, XP, 0)
    for j in range(40):
        if j+1 < 40: buildA((j+1) & 1, XP + (j+1)//16, (j+1) % 16)
        e.wait_vm("wq%d" % j)
        v("v_mfma_f32_16x16x32_bf16 %s, %s, %s, %s" % (rng(ACO, 4), rng(AOP[j & 1], 4), wreg(j), rng(ACO, 4) if j else "0"))
        issue_wq()
    s("s_mov_b32 exec_hi, 0")
    ds("ds_write_b128 v%d, %s offset:%d" % (vLdsW, rng(ACO, 4), LDS_Q))
    s("s_mov_b64 exec, -1")
    s("s_waitcnt lgkmcnt(0)")
    stamp(1)
    s("s_barrier")
    for j in range(40):
        if j - woD >= 0: e.wait_vm("wo%d" % (j - woD))
        e.load("buffer_load_dwordx4", wreg(j), "v%d" % vWO, WO_, sWO, (j % 5)*256, woflags, tag="wo%d" % j)
        if j % 5 == 4: s("s_add_u32 %s, %s, %d" % (sWO, sWO, 4*1280))
    vO, vR, vRd, vPub = T+2, T+3, T+4, T+5
    v("v_and_b32 v%d, 7, %s" % (vO, vCc))
    v("v_lshl_add_u32 v%d, v%d, 2, %s" % (vO, vO, vG))
    v("v_lshlrev_b32 v%d, 2, v%d" % (vO, vO))
    s("s_lshl_b32 s15, s22, 7")
    v("v_add_u32 v%d, s15, v%d" % (vO, vO))
    s("s_mul_i32 s15, s22, %d" % (2560-512))
    v("v_add_u32 v%d, s15, v%d" % (vR, vLdsW))
    v("v_subrev_u32 v%d, 256, v0" % T)
    v("v_lshlrev_b32 v%d, 4, v%d" % (vRd, T))
    v("v_lshrrev_b32 v%d, 3, v%d" % (vPub, T))
    v("v_lshlrev_b32 v%d, 12, v%d" % (vPub, vPub))
    v("v_and_b32 v%d, 7, v%d" % (T+1, T))
    v("v_lshl_add_u32 v%d, v%d, 4, v%d" % (vPub, T+1, vPub))
    v("v_cmp_gt_u32 s[74:75], 160, v%d" % T) if False else v("v_cmp_gt_u32 vcc, 160, v%d" % T)
    s("s_mov_b64 s[74:75], vcc")
    s("s_mul_i32 %s, %s, %d" % (sPub, sG, 20*4096))
    s("s_lshl_b32 s15, %s, 7" % sH)
    s("s_add_u32 %s, %s, s15" % (sPub, sPub))
    s("s_add_u32 %s, %s, 1" % (sTag, sTag))
    s("s_and_b32 %s, %s, 0xff" % (sTag, sTag))
    v("v_mov_b32 v%d, 0xffffff00" % (T+6))
    v("v_mov_b32 v%d, %s" % (T+7, sTag))
    e.wait_vm("wo39")
    stamp(2)
    s("s_barrier")
    stamp(4)
    OP = XP
    for u in range(4):
        ds("ds_read_b32 v%d, v%d offset:%d" % (OP+u, vO, LDS_O + u*512))
    s("s_waitcnt lgkmcnt(2)")
    v("v_add_f32 v%d, v%d, v%d" % (OP, OP, OP+1))
    s("s_waitcnt lgkmcnt(0)")
    v("v_add_f32 v%d, v%d, v%d" % (OP+2, OP+2, OP+3))
    v("v_add_f32 v%d, v%d, v%d" % (OP, OP, OP+2))
    v("v_cvt_pk_bf16_f32 v%d, v%d, v%d" % (OP, OP, OP))
    buildA(0, OP, 0)
    for jj in range(8):
        if jj+1 < 8: buildA((jj+1) & 1, OP, jj+1)
        for ct in range(5):
            a = rng(ACO+4*ct, 4)
            v("v_mfma_f32_16x16x32_bf16 %s, %s, %s, %s" % (a, rng(AOP[jj & 1], 4), wreg(jj*5+ct), a if jj else "0"))
    s("s_mov_b32 exec_hi, 0")
    for ct in range(5):
        ds("ds_write_b128 v%d, %s offset:%d" % (vR, rng(ACO+4*ct, 4), LDS_R + ct*512))
    s("s_mov_b64 exec, s[74:75]")
    s("s_waitcnt lgkmcnt(0)")
    s("s_barrier")
    stamp(5)
    s("s_cbranch_execz L_done")
    for u in range(4):
        ds("ds_read_b128 %s, v%d offset:%d" % (rng(WR+4*u, 4), vRd, LDS_R + u*2560))
    s("s_waitcnt lgkmcnt(2)")
    v("v_pk_add_f32 %s, %s, %s" % (rng(WR, 2), rng(WR, 2), rng(WR+4, 2)))
    v("v_pk_add_f32 %s, %s, %s" % (rng(WR+2, 2), rng(WR+2, 2), rng(WR+6, 2)))
    s("s_waitcnt lgkmcnt(0)")
    v("v_pk_add_f32 %s, %s, %s" % (rng(WR+8, 2), rng(WR+8, 2), rng(WR+12, 2)))
    v("v_pk_add_f32 %s, %s, %s" % (rng(WR+10, 2), rng(WR+10, 2), rng(WR+14, 2)))
    v("v_pk_add_f32 %s, %s, %s" % (rng(WR, 2), rng(WR, 2), rng(WR+8, 2)))
    v("v_pk_add_f32 %s, %s, %s" % (rng(WR+2, 2), rng(WR+2, 2), rng(WR+10, 2)))
    for k in range(4):
        v("v_and_or_b32 v%d, v%d, v%d, v%d" % (WR+k, WR+k, T+6, T+7))
    e.ins("buffer_store_dwordx4 %s, v%d, %s, %s offen sc1" % (rng(WR, 4), vPub, WS_, sPub), r=[rng(WR, 4), "v%d" % vPub, sPub], kind='vmem')
    if stamps:
        e.label("L_stamps")
        s("s_waitcnt vmcnt(0)")
        stamp(6)
        s("s_waitcnt lgkmcnt(0)")
        s("s_cmp_eq_u32 %s, 4" % sW)
        s("s_cselect_b32 s15, 1, 0")
        s("s_cmp_eq_u32 %s, 0" % sW)
        s("s_cselect_b32 s14, 1, s15")
        s("s_cmp_eq_u32 s14, 0")
        s("s_cbranch_scc1 L_done")
        s("s_lshl_b32 s14, s18, 1")
        s("s_add_u32 s14, s14, s15")
        s("s_lshl_b32 s14, s14, 6")
        s("s_add_u32 s14, s14, %d" % STAMP_OFF)
        s("s_getreg_b32 s94, hwreg(HW_REG_XCC_ID)")
        s("s_mov_b64 exec, 1")
        v("v_mov_b32 v%d, 0" % T)
        for k in range(8):
            v("v_mov_b32 v%d, s%d" % (64+k, 80+2*k))
        e.ins("buffer_store_dwordx4 %s, v%d, %s, s14 offen" % (rng(64, 4), T, WS_), r=[rng(64, 4), "v%d" % T], kind='vmem')
        e.ins("buffer_store_dwordx4 %s, v%d, %s, s14 offen offset:16" % (rng(68, 4), T, WS_), r=[rng(68, 4), "v%d" % T], kind='vmem')
    e.label("L_done")
    s("s_endpgm")
    nv = 224
    tail = ['.section .rodata,"a"', ".p2align 6", ".amdhsa_kernel %s" % name,
            "  .amdhsa_next_free_vgpr %d" % nv, "  .amdhsa_next_free_sgpr 96", "  .amdhsa_accum_offset %d" % nv,
            "  .amdhsa_group_segment_fixed_size 0", "  .amdhsa_kernarg_size 104", "  .amdhsa_user_sgpr_count 2",
            "  .amdhsa_user_sgpr_kernarg_segment_ptr 1", "  .amdhsa_system_sgpr_workgroup_id_x 1", ".end_amdhsa_kernel"]
    return "\n".join(hdr) + "\n" + e.text() + "\n".join(tail) + "\n"

def report(stm):
    import numpy as np
    rows = []
    cons = [g for g in range(256) if (g & 31) < 20]
    for st in stm:
        w0 = st[:, 0, :]; w4 = st[:, 1, :]; t0 = min(w0[:, 0].min(), w4[:, 0].min())
        d = (w0[:, :7] - t0)/100; h = (w4[:, :7] - t0)/100
        rows.append([d[:, 0].max(), np.median(d[:, 1]), np.median(h[:, 1]), h[:, 1].max(), np.median(d[:, 2]), d[:, 2].max(), np.median(h[:, 2]), h[:, 2].max(),
                     np.median(d[:, 3]), d[:, 3].max(), h[:, 4].min(), h[:, 4].mean(), h[:, 4].max(), np.median(h[:, 5]-h[:, 4]), h[:, 5].max(), h[:, 6].max(), d[cons, 6].max()])
    r = np.round(np.median(np.array(rows), axis=0), 2)
    print("   lastStart %.2f firstIssue %.2f | qpart med %.2f max %.2f | q-ready med %.2f max %.2f | wo landed med %.2f max %.2f | Kdone med %.2f max %.2f | Vdone min %.2f mean %.2f max %.2f | outproj dur %.2f done max %.2f | published max %.2f | final %.2f" % tuple(r))
    st = stm[-1]; xcc = st[:, 0, 7] & 7; t0 = st[:, 0, 0].min()
    print("   xcd mean Vdone:", [round(float(np.mean([(((s_[(s_[:, 0, 7] & 7) == x, 1, 4]-s_[:, 0, 0].min())/100).mean()) for s_ in stm])), 1) for x in range(8)])
if __name__ == "__main__":
    cfg = json.loads(sys.argv[2]) if len(sys.argv) > 2 else {}
    open(sys.argv[1], "w").write(gen(**cfg))
```

```python
import sys, math, json, struct
from asmlib import Em
NAME = "concat_heads__mha_block_cached__gqa_block_cached__decode_kernel"
def f2u(x): return struct.unpack("<I", struct.pack("<f", x))[0]
def bitrev4(i): return ((i & 1) << 3) | ((i & 2) << 1) | ((i & 4) >> 1) | ((i & 8) >> 3)
INBOX = 160*4096
EPOCH_OFF = INBOX
STAMP_OFF = INBOX + 4096
NSTAMP = 8
TRACE_OFF = STAMP_OFF + 256*2*64

def gen(D=(5,), xoff=0, kvflags="nt", wqflags="nt", woflags="nt", wqD=40, woD=4, stamps=False, pollsleep=2, wmap=0, trace=False, dbgwg=False, name=NAME):
    if isinstance(D, int): D = (D,)
    e = Em()
    s, v, ds = e.s, e.v, e.ds
    LDS_Q, LDS_O, LDS_ML, LDS_R = 0, 2048, 4096, 4352
    LDS_BYTES = LDS_R + 4*2560
    hdr = []
    hdr.append("; @launch grid=(256,1,1) block=(512,1,1) lds=%d" % LDS_BYTES)
    hdr.append('.amdgcn_target "amdgcn-amd-amdhsa--gfx950"')
    hdr.append(".text\n.globl %s\n.p2align 8\n.type %s,@function\n%s:" % (name, name, name))
    KV_, WQ_, WO_, X_, WS_, OUT_ = "s[24:27]", "s[32:35]", "s[36:39]", "s[40:43]", "s[44:47]", "s[52:55]"
    sW, sH, sB, sBR, sK, sT, sG, sCnt = "s56", "s57", "s58", "s59", "s60", "s61", "s62", "s63"
    mB1, mB0 = "s[64:65]", "s[66:67]"
    sM, sL, sWO, sIn, sPub, sIt, sTag = "s68", "s69", "s70", "s71", "s72", "s73", "s76"
    sVlo, sVhi = "s28", "s29"
    vLane16, vG, vCc = "v1", "v2", "v3"
    MASK = [4, 5, 6, 7]
    AOP = [8, 12]
    vLdsW = 16
    T = 17
    def rng(a, n): return "v[%d:%d]" % (a, a+n-1)
    def stamp(k):
        if stamps: s("s_memrealtime s[%d:%d]" % (80+2*k, 81+2*k))
    def tr():
        if trace:
            s("s_memrealtime s[96:97]")
            s("s_waitcnt lgkmcnt(0)")
            s("s_mov_b32 m0, s79")
            e.ins("v_writelane_b32 v26, s96, m0", w=["v26"], r=["s96"], kind='valu')
            s("s_add_u32 s79, s79, 1")
    def buildA(buf, src, lane):
        for w in range(4):
            v("v_and_b32_dpp v%d, v%d, v%d row_newbcast:%d row_mask:0xf bank_mask:0xf" % (AOP[buf]+w, src, MASK[w], lane))
    def make_masks():
        v("v_and_b32 v%d, 1, %s" % (T, vCc))
        v("v_lshlrev_b32 v%d, 4, v%d" % (T, T))
        v("v_mov_b32 v%d, 0xffff" % (T+1))
        v("v_lshlrev_b32 v%d, v%d, v%d" % (T, T, T+1))
        v("v_lshrrev_b32 v%d, 1, %s" % (T+1, vCc))
        for w in range(4):
            v("v_cmp_eq_u32 vcc, %d, v%d" % (w, T+1))
            v("v_cndmask_b32_e32 v%d, 0, v%d, vcc" % (MASK[w], T))
        v("v_lshlrev_b32 v%d, 5, %s" % (T, vCc))
        v("v_lshl_add_u32 v%d, %s, 4, v%d" % (T, vG, T))
        s("s_and_b32 s15, %s, 3" % sW)
        s("s_lshl_b32 s15, s15, 9")
        v("v_add_u32 v%d, s15, v%d" % (vLdsW, T))
    s("s_cmp_ge_u32 s2, 256")
    s("s_cbranch_scc1 L_done")
    stamp(0)
    if wmap == 0:
        s("s_mov_b32 s18, s2")
    else:
        s("s_and_b32 s14, s2, 7")
        s("s_bfe_u32 s15, s2, 0x30003")
        s("s_lshr_b32 s19, s2, 6")
        if wmap == 1:
            s("s_lshr_b32 s18, s14, 2"); s("s_lshl_b32 s18, s18, 7")
            s("s_and_b32 s14, s14, 3"); s("s_lshl_b32 s14, s14, 3"); s("s_add_u32 s18, s18, s14"); s("s_add_u32 s18, s18, s15")
        elif wmap == 2:
            s("s_and_b32 s18, s14, 1"); s("s_lshl_b32 s18, s18, 7")
            s("s_lshr_b32 s14, s14, 1"); s("s_lshl_b32 s14, s14, 3"); s("s_add_u32 s18, s18, s14"); s("s_add_u32 s18, s18, s15")
        elif wmap == 3:
            s("s_add_u32 s14, s14, s15"); s("s_and_b32 s14, s14, 7")
            s("s_lshr_b32 s18, s15, 2"); s("s_lshl_b32 s18, s18, 7"); s("s_add_u32 s18, s18, s14")
            s("s_and_b32 s15, s15, 3"); s("s_lshl_b32 s15, s15, 3"); s("s_add_u32 s18, s18, s15")
        s("s_lshl_b32 s19, s19, 5"); s("s_add_u32 s18, s18, s19")
    s("s_lshr_b32 %s, s18, 7" % sBR)
    s("s_mul_i32 s3, %s, 40" % sBR)
    s("s_load_dwordx8 s[4:11], s[0:1], s3")
    s("s_add_u32 s3, s3, 32")
    s("s_load_dwordx2 s[12:13], s[0:1], s3")
    s("s_load_dwordx2 s[16:17], s[0:1], 80")
    s("s_load_dwordx2 s[20:21], s[0:1], 96")
    v("v_lshrrev_b32 v%d, 6, v0" % T)
    v("v_and_b32 v%d, 63, v0" % (T+1))
    v("v_readfirstlane_b32 %s, v%d" % (sW, T))
    v("v_lshlrev_b32 %s, 4, v%d" % (vLane16, T+1))
    v("v_lshrrev_b32 %s, 4, v%d" % (vG, T+1))
    v("v_and_b32 %s, 15, v0" % vCc)
    s("s_and_b32 %s, s18, 31" % sH)
    s("s_lshr_b32 %s, s18, 5" % sG)
    s("s_and_b32 %s, %s, 3" % (sB, sG))
    s("s_mov_b32 s46, 0x%x" % (TRACE_OFF + 256*2*256))
    if trace:
        v("v_mov_b32 v26, 0")
        s("s_mov_b32 s79, 0")
    s("s_mov_b32 s47, 0x20000")
    s("s_cmp_ge_u32 %s, 4" % sW)
    s("s_cbranch_scc1 L_helper")
    Q, S, Pp, Pa, Pb, Pc, Pt, ACC, vC = 28, 32, 48, 52, 54, 56, 58, 60, 27
    RING, R = 64, 32
    s("s_and_b32 s14, s18, 127")
    s("s_lshl_b32 s14, s14, 20")
    s("s_mov_b32 s26, 0x100000")
    s("s_mov_b32 s27, 0x20000")
    s("s_lshl_b32 %s, %s, 12" % (sK, sW))
    if xoff:
        s("s_and_b32 s15, s2, 7")
        s("s_mul_i32 s15, s15, %d" % (xoff*4096))
        s("s_add_u32 %s, %s, s15" % (sK, sK))
    s("s_mov_b32 %s, 0" % sCnt)
    s("s_waitcnt lgkmcnt(0)")
    s("s_add_u32 s24, s6, s14"); s("s_addc_u32 s25, s7, 0")
    slot_of = lambda n: n % 32 if n < 56 else 16 + (n - 48) % 16
    def slot(n): return rng(RING + 4*slot_of(n), 4)
    issued = [0]
    def issue_kv(pace=True):
        m = issued[0]; issued[0] += 1
        d = D[m % len(D)]
        if pace and m - d >= 0: e.wait_vm("kv%d" % (m - d))
        e.load("buffer_load_dwordx4", slot(m), vLane16, KV_, sK, (m % 4)*1024, kvflags, tag="kv%d" % m)
        if m % 4 == 3:
            s("s_add_u32 %s, %s, 0x4000" % (sK, sK))
            s("s_and_b32 %s, %s, 0xfffff" % (sK, sK))
            if m >= 48:
                s("s_add_u32 %s, %s, 1" % (sCnt, sCnt))
                s("s_cmp_eq_u32 %s, %d" % (sCnt, 64 - 12))
                s("s_cselect_b32 s24, %s, s24" % sVlo)
                s("s_cselect_b32 s25, %s, s25" % sVhi)
    for m in range(max(D)): issue_kv()
    stamp(1)
    s("s_add_u32 %s, s8, s14" % sVlo); s("s_addc_u32 %s, s9, 0" % sVhi)
    s("s_mov_b32 s44, s20"); s("s_mov_b32 s45, s21")
    s("s_lshl_b32 s78, %s, 7" % sG)
    s("s_add_u32 s78, s78, %d" % EPOCH_OFF)
    s("s_load_dword %s, s[20:21], s78" % sTag)
    s("s_mov_b32 s64, 0xcccccccc"); s("s_mov_b32 s65, 0xcccccccc")
    s("s_mov_b32 s66, 0xaaaaaaaa"); s("s_mov_b32 s67, 0xaaaaaaaa")
    make_masks()
    v("v_mov_b32 v%d, 0x%08x" % (vC, f2u(math.log2(math.e)/math.sqrt(128.0))))
    v("v_lshlrev_b32 v%d, 5, %s" % (T, vCc))
    while issued[0] < R - 2:
        if issued[0] % 6 == 0: tr()
        issue_kv()
    tr()
    s("s_barrier")
    QT = S
    for u in range(4):
        ds("ds_read_b128 %s, v%d offset:%d" % (rng(QT+8*u, 4), T, LDS_Q + u*512))
        ds("ds_read_b128 %s, v%d offset:%d" % (rng(QT+8*u+4, 4), T, LDS_Q + u*512 + 16))
    issue_kv()
    for u in range(1, 4):
        s("s_waitcnt lgkmcnt(%d)" % (6 - 2*u))
        for k in range(0, 8, 2):
            v("v_pk_add_f32 %s, %s, %s" % (rng(QT+k, 2), rng(QT+k, 2), rng(QT+8*u+k, 2)))
    issue_kv()
    for k in range(4):
        v("v_cvt_pk_bf16_f32 v%d, v%d, v%d" % (Q+k, QT+2*k, QT+2*k+1))
    stamp(2)
    pend = []
    def lvlA(n):
        i = n % 16
        d = Pa + ((i >> 1) & 1)
        v("v_add_f32_dpp v%d, v%d, v%d row_ror:8 row_mask:0xf bank_mask:0x3" % (d, Pp+(n-1) % 4, Pp+(n-1) % 4))
        v("v_add_f32_dpp v%d, v%d, v%d row_ror:8 row_mask:0xf bank_mask:0xc" % (d, Pp+n % 4, Pp+n % 4))
        if i % 4 == 3: pend.append(("B", n))
    def lvlB(n):
        i = n % 16
        d = Pb + ((i >> 2) & 1)
        v("v_add_f32_dpp v%d, v%d, v%d row_half_mirror row_mask:0xf bank_mask:0x5" % (d, Pa, Pa))
        v("v_add_f32_dpp v%d, v%d, v%d row_half_mirror row_mask:0xf bank_mask:0xa" % (d, Pa+1, Pa+1))
        if i % 8 == 7: pend.append(("C", n))
    def lvlC(n):
        i = n % 16
        d = Pc + ((i >> 3) & 1)
        v("v_add_f32_dpp v%d, v%d, v%d quad_perm:[2,3,0,1] row_mask:0xf bank_mask:0xf" % (Pt, Pb, Pb))
        v("v_add_f32_dpp v%d, v%d, v%d quad_perm:[2,3,0,1] row_mask:0xf bank_mask:0xf" % (Pt+1, Pb+1, Pb+1))
        v("v_cndmask_b32_e64 v%d, v%d, v%d, %s" % (d, Pt, Pt+1, mB1))
        if i == 15: pend.append(("D", n))
    def lvlD(n):
        v("v_add_f32_dpp v%d, v%d, v%d quad_perm:[1,0,3,2] row_mask:0xf bank_mask:0xf" % (Pt, Pc, Pc))
        v("v_add_f32_dpp v%d, v%d, v%d quad_perm:[1,0,3,2] row_mask:0xf bank_mask:0xf" % (Pt+1, Pc+1, Pc+1))
        for k in range(15): v("v_mov_b32 v%d, v%d" % (S+k, S+k+1))
        v("v_cndmask_b32_e64 v%d, v%d, v%d, %s" % (S+15, Pt, Pt+1, mB0))
    def run_pend():
        k, n = pend.pop(0)
        {"A": lvlA, "B": lvlB, "C": lvlC, "D": lvlD}[k](n)
    def kstep(n, do_issue):
        if do_issue: issue_kv()
        e.wait_vm("kv%d" % n)
        base = RING + 4*slot_of(n)
        p = Pp + n % 4
        v("v_dot2_f32_bf16 v%d, v%d, v%d, 0" % (p, base, Q))
        for k in range(1, 4):
            v("v_dot2_f32_bf16 v%d, v%d, v%d, v%d" % (p, base+k, Q+k, p))
        if pend: run_pend()
        if n % 2 == 1: pend.append(("A", n))
    for n in range(48):
        if n % 16 == 0: tr()
        kstep(n, n % 2 == 1)
    assert issued[0] == 56
    st0 = [(k, n % 16) for k, n in pend]
    s("s_mov_b32 %s, 13" % sIt)
    e.fence()
    e.label("L_kloop")
    tr()
    for n in range(48, 64): kstep(n, True)
    assert st0 == [(k, n % 16) for k, n in pend]
    s("s_sub_u32 %s, %s, 1" % (sIt, sIt))
    s("s_cmp_lg_u32 %s, 0" % sIt)
    e.fence()
    s("s_cbranch_scc1 L_kloop")
    issue_kv()
    while pend: run_pend()
    stamp(3)
    v("v_max3_f32 v%d, v%d, v%d, v%d" % (T, S, S+1, S+2))
    for k in range(3, 15, 2):
        v("v_max3_f32 v%d, v%d, v%d, v%d" % (T, T, S+k, S+k+1))
    v("v_max_f32 v%d, v%d, v%d" % (T, T, S+15))
    def wave_reduce(op, r, dst):
        for sh in (8, 4, 2, 1):
            v("%s_dpp v%d, v%d, v%d row_ror:%d row_mask:0xf bank_mask:0xf" % (op, r, r, r, sh))
        v("%s_dpp v%d, v%d, v%d row_bcast:15 row_mask:0xa bank_mask:0xf" % (op, r, r, r))
        v("%s_dpp v%d, v%d, v%d row_bcast:31 row_mask:0xc bank_mask:0xf" % (op, r, r, r))
        v("v_readlane_b32 %s, v%d, 63" % (dst, r))
    wave_reduce("v_max_f32", T, sM)
    issue_kv()
    vM = T+3
    v("v_mul_f32 v%d, %s, v%d" % (vM, sM, vC))
    for k in range(16):
        v("v_fma_f32 v%d, v%d, v%d, -v%d" % (S+k, S+k, vC, vM))
    for k in range(16):
        v("v_exp_f32 v%d, v%d" % (S+k, S+k))
    issue_kv()
    v("v_add_f32 v%d, v%d, v%d" % (T, S, S+1))
    for k in range(2, 16):
        v("v_add_f32 v%d, v%d, v%d" % (T, T, S+k))
    for k in range(16):
        v("v_cvt_pk_bf16_f32 v%d, v%d, v%d" % (S+k, S+k, S+k))
    wave_reduce("v_add_f32", T, sL)
    issue_kv()
    v("v_mov_b32 v%d, %s" % (vM+1, sL))
    s("s_lshl_b32 s15, %s, 3" % sW)
    v("v_mov_b32 v%d, s15" % T)
    s("s_mov_b64 exec, 1")
    ds("ds_write_b64 v%d, %s offset:%d" % (T, rng(vM, 2), LDS_ML))
    s("s_mov_b64 exec, -1")
    for k in range(4): v("v_mov_b32 v%d, 0" % (ACC+k))
    buildA(0, S, bitrev4(0))
    base_n = 64
    s("s_mov_b32 %s, 15" % sIt)
    e.fence()
    def vbody(last):
        for i in range(16):
            n = base_n + i
            if issued[0] < 96: issue_kv()
            e.wait_vm("kv%d" % n)
            v("v_mfma_f32_16x16x32_bf16 %s, %s, %s, %s" % (rng(ACC, 4), rng(AOP[i & 1], 4), slot(n), rng(ACC, 4)))
            if i < 15: buildA((i+1) & 1, S, bitrev4(i+1))
            elif not last:
                buildA(0, S+1, bitrev4(0))
                for k in range(15): v("v_mov_b32 v%d, v%d" % (S+k, S+k+1))
    e.label("L_vloop")
    tr()
    vbody(False)
    s("s_sub_u32 %s, %s, 1" % (sIt, sIt))
    s("s_cmp_lg_u32 %s, 0" % sIt)
    e.fence()
    s("s_cbranch_scc1 L_vloop")
    ML = Pp
    v("v_mov_b32 v%d, 0" % T)
    s("s_mov_b32 %s, 0" % sIt)
    issue_kv()
    e.label("L_ml")
    ds("ds_read_b128 %s, v%d offset:%d" % (rng(ML, 4), T, LDS_ML))
    ds("ds_read_b128 %s, v%d offset:%d" % (rng(ML+4, 4), T, LDS_ML + 16))
    s("s_waitcnt lgkmcnt(0)")
    v("v_min_u32 v%d, v%d, v%d" % (T+1, ML+1, ML+3))
    v("v_min3_u32 v%d, v%d, v%d, v%d" % (T+1, T+1, ML+5, ML+7))
    s("s_add_u32 %s, %s, 1" % (sIt, sIt))
    v("v_readfirstlane_b32 s15, v%d" % (T+1))
    s("s_cmp_ge_u32 %s, 0x100000" % sIt)
    s("s_cbranch_scc1 L_ml_ok")
    s("s_cmp_eq_u32 s15, 0")
    s("s_cbranch_scc1 L_ml")
    e.label("L_ml_ok")
    issue_kv()
    v("v_max3_f32 v%d, v%d, v%d, v%d" % (T+1, ML, ML+2, ML+4))
    v("v_max_f32 v%d, v%d, v%d" % (T+1, T+1, ML+6))
    for u in range(4): v("v_sub_f32 v%d, v%d, v%d" % (ML+2*u, ML+2*u, T+1))
    v("v_sub_f32 v%d, v%d, v%d" % (vM, vM, T+1))
    for u in range(4): v("v_exp_f32 v%d, v%d" % (ML+2*u, ML+2*u))
    v("v_exp_f32 v%d, v%d" % (vM, vM))
    v("v_mul_f32 v%d, v%d, v%d" % (T+1, ML, ML+1))
    for u in range(1, 4): v("v_fmac_f32 v%d, v%d, v%d" % (T+1, ML+2*u, ML+2*u+1))
    v("v_rcp_f32 v%d, v%d" % (T+1, T+1))
    v("v_mul_f32 v%d, v%d, v%d" % (vM, vM, T+1))
    base_n = 80
    tr()
    vbody(True)
    tr()
    stamp(4)
    for k in range(4): v("v_mul_f32 v%d, v%d, v%d" % (ACC+k, ACC+k, vM))
    s("s_mov_b32 exec_hi, 0")
    ds("ds_write_b128 v%d, %s offset:%d" % (vLdsW, rng(ACC, 4), LDS_O))
    s("s_mov_b64 exec, -1")
    s("s_waitcnt lgkmcnt(0)")
    s("s_barrier")
    s("s_cmp_lg_u32 %s, 0" % sW)
    s("s_cbranch_scc1 L_done")
    if not stamps:
        s("s_cmp_ge_u32 %s, 20" % sH)
        s("s_cbranch_scc1 L_done")
    s("s_mul_i32 %s, %s, 20" % (sIn, sG))
    s("s_add_u32 %s, %s, %s" % (sIn, sIn, sH))
    s("s_lshl_b32 %s, %s, 12" % (sIn, sIn))
    s("s_mov_b32 s52, s16"); s("s_mov_b32 s53, s17"); s("s_mov_b32 s54, %d" % (4*2560)); s("s_mov_b32 s55, 0x20000")
    s("s_mul_i32 s14, %s, 2560" % sB)
    s("s_mul_i32 s3, %s, 1280" % sBR)
    s("s_add_u32 s14, s14, s3")
    s("s_lshl_b32 s3, %s, 6" % sH)
    s("s_add_u32 s14, s14, s3")
    v("v_lshrrev_b32 v%d, 1, %s" % (T+2, vLane16))
    v("v_mov_b32 v%d, 0" % (T+4))
    s("s_mov_b32 %s, 0" % sIt)
    s("s_add_u32 %s, %s, 1" % (sTag, sTag))
    s("s_and_b32 s77, %s, 0xff" % sTag)
    s("s_barrier")
    if stamps:
        s("s_cmp_ge_u32 %s, 20" % sH)
        s("s_cbranch_scc1 L_stamps")
    G0 = RING
    e.label("L_poll")
    for k in range(4):
        e.ins("buffer_load_dwordx4 %s, %s, %s, %s offen offset:%d sc1" % (rng(G0+4*k, 4), vLane16, WS_, sIn, k*1024), w=[rng(G0+4*k, 4)], r=[vLane16, sIn], kind='vmem')
    s("s_waitcnt vmcnt(0)")
    for k in range(16):
        v("v_xor_b32 v%d, s77, v%d" % (G0+k, G0+k))
    v("v_or_b32 v%d, v%d, v%d" % (T, G0, G0+1))
    for k in range(2, 16, 2):
        v("v_or3_b32 v%d, v%d, v%d, v%d" % (T, T, G0+k, G0+k+1))
    v("v_and_b32 v%d, 0xff, v%d" % (T, T))
    v("v_cmp_ne_u32 vcc, 0, v%d" % T)
    s("s_add_u32 %s, %s, 1" % (sIt, sIt))
    s("s_cmp_ge_u32 %s, 0x40000" % sIt)
    s("s_cbranch_scc1 L_poll_ok")
    e.ins("s_cbranch_vccz L_poll_ok", r=["vcc"], kind='salu')
    if pollsleep: s("s_sleep %d" % pollsleep)
    s("s_branch L_poll")
    e.label("L_poll_ok")
    for k in range(1, 4):
        v("v_pk_add_f32 %s, %s, %s" % (rng(G0, 2), rng(G0, 2), rng(G0+4*k, 2)))
        v("v_pk_add_f32 %s, %s, %s" % (rng(G0+2, 2), rng(G0+2, 2), rng(G0+4*k+2, 2)))
    for k in range(4):
        v("v_add_f32_dpp v%d, v%d, v%d row_ror:8 row_mask:0xf bank_mask:0xf" % (G0+k, G0+k, G0+k))
    for sw in ("v_permlane16_swap_b32", "v_permlane32_swap_b32"):
        for k in range(4): v("v_mov_b32 v%d, v%d" % (G0+4+k, G0+k))
        for k in range(4): v("%s v%d, v%d" % (sw, G0+k, G0+4+k))
        for k in range(4): v("v_add_f32 v%d, v%d, v%d" % (G0+k, G0+k, G0+4+k))
    v("v_cvt_pk_bf16_f32 v%d, v%d, v%d" % (G0, G0, G0+1))
    v("v_cvt_pk_bf16_f32 v%d, v%d, v%d" % (G0+1, G0+2, G0+3))
    v("v_mov_b32 v%d, %s" % (T+3, sTag))
    s("s_mov_b64 exec, 0xff")
    e.ins("buffer_store_dwordx2 %s, v%d, %s, s14 offen" % (rng(G0, 2), T+2, OUT_), r=[rng(G0, 2), "v%d" % (T+2), "s14"], kind='vmem')
    s("s_cmp_lg_u32 %s, 0" % sH)
    s("s_cbranch_scc1 %s" % ("L_stamps" if stamps else "L_done"))
    s("s_mov_b64 exec, 1")
    e.ins("buffer_store_dword v%d, v%d, %s, s78 offen sc1" % (T+3, T+4, WS_), r=["v%d" % (T+3), "v%d" % (T+4), "s78"], kind='vmem')
    if stamps: s("s_branch L_stamps")
    s("s_endpgm")
    e.fence()
    e.label("L_helper")
    e.vm = []; e.vm_done = -1
    XP, ACO, WR = 28, 32, 64
    vWQ, vWO, vX = 52, 53, 54
    def wreg(j): return rng(WR + 4*j, 4)
    s("s_sub_u32 s22, %s, 4" % sW)
    s("s_mov_b32 s34, 0x%x" % (640*8192)); s("s_mov_b32 s35, 0x20000")
    s("s_mov_b32 s42, 0x%x" % (4*1280)); s("s_mov_b32 s43, 0x20000")
    v("v_lshlrev_b32 v%d, 4, %s" % (T+2, vCc))
    v("v_lshl_add_u32 v%d, %s, 13, v%d" % (vWQ, vG, T+2))
    v("v_lshl_add_u32 v%d, %s, 2, %s" % (vX, vCc, vG))
    v("v_lshlrev_b32 v%d, 1, v%d" % (vX, vX))
    s("s_mul_i32 s15, s22, %d" % (160*8192))
    s("s_lshl_b32 %s, %s, 8" % (sT, sH))
    s("s_add_u32 %s, %s, s15" % (sT, sT))
    s("s_mul_i32 s14, %s, 1280" % sB)
    s("s_mul_i32 s15, s22, 320")
    s("s_add_u32 s14, s14, s15")
    s("s_lshl_b32 s23, %s, 7" % sG)
    s("s_add_u32 s23, s23, %d" % EPOCH_OFF)
    s("s_waitcnt lgkmcnt(0)")
    s("s_mov_b32 s32, s10"); s("s_mov_b32 s33, s11")
    s("s_mov_b32 s40, s4"); s("s_mov_b32 s41, s5")
    for k in range(3):
        e.load("buffer_load_ushort", "v%d" % (XP+k), "v%d" % vX, X_, "s14", 128*k, "", tag="x%d" % k)
    wq_issued = [0]
    def issue_wq():
        j = wq_issued[0]
        if j >= 40: return
        wq_issued[0] += 1
        e.load("buffer_load_dwordx4", wreg(j), "v%d" % vWQ, WQ_, sT, 0, wqflags, tag="wq%d" % j)
        s("s_add_u32 %s, %s, 0x8000" % (sT, sT))
    for j in range(wqD): issue_wq()
    s("s_load_dword %s, s[20:21], s23" % sTag)
    s("s_mov_b32 s44, s20"); s("s_mov_b32 s45, s21")
    s("s_mov_b32 s36, s12"); s("s_mov_b32 s37, s13"); s("s_mov_b32 s38, 0x%x" % (4096*1280)); s("s_mov_b32 s39, 0x20000")
    s("s_lshl_b32 %s, %s, 7" % (sWO, sH))
    s("s_lshl_b32 s15, s22, 5")
    s("s_add_u32 %s, %s, s15" % (sWO, sWO))
    s("s_mul_i32 %s, %s, 1280" % (sWO, sWO))
    v("v_mul_u32_u24 v%d, 1280, %s" % (T, vG))
    v("v_add_u32 v%d, v%d, v%d" % (vWO, T, T+2))
    make_masks()
    v("v_mov_b32 v%d, 0" % T)
    v("v_lshlrev_b32 v%d, 2, %s" % (T+1, vCc))
    ds("ds_write_b32 v%d, v%d offset:%d" % (T+1, T, LDS_ML))
    tr()
    e.wait_vm("x2")
    tr()
    for k in range(3): v("v_lshl_or_b32 v%d, v%d, 16, v%d" % (XP+k, XP+k, XP+k))
    buildA(0, XP, 0)
    for j in range(40):
        if j+1 < 40: buildA((j+1) & 1, XP + (j+1)//16, (j+1) % 16)
        e.wait_vm("wq%d" % j)
        if j % 4 == 0 or j == 39: tr()
        v("v_mfma_f32_16x16x32_bf16 %s, %s, %s, %s" % (rng(ACO, 4), rng(AOP[j & 1], 4), wreg(j), rng(ACO, 4) if j else "0"))
        issue_wq()
    s("s_mov_b32 exec_hi, 0")
    ds("ds_write_b128 v%d, %s offset:%d" % (vLdsW, rng(ACO, 4), LDS_Q))
    s("s_mov_b64 exec, -1")
    s("s_waitcnt lgkmcnt(0)")
    stamp(1)
    s("s_barrier")
    for j in range(40):
        if j - woD >= 0: e.wait_vm("wo%d" % (j - woD))
        if j % 8 == 0: tr()
        e.load("buffer_load_dwordx4", wreg(j), "v%d" % vWO, WO_, sWO, (j % 5)*256, woflags, tag="wo%d" % j)
        if j % 5 == 4: s("s_add_u32 %s, %s, %d" % (sWO, sWO, 4*1280))
    vO, vR, vRd, vPub = T+2, T+3, T+4, T+5
    v("v_and_b32 v%d, 7, %s" % (vO, vCc))
    v("v_lshl_add_u32 v%d, v%d, 2, %s" % (vO, vO, vG))
    v("v_lshlrev_b32 v%d, 2, v%d" % (vO, vO))
    s("s_lshl_b32 s15, s22, 7")
    v("v_add_u32 v%d, s15, v%d" % (vO, vO))
    s("s_mul_i32 s15, s22, %d" % (2560-512))
    v("v_add_u32 v%d, s15, v%d" % (vR, vLdsW))
    v("v_subrev_u32 v%d, 256, v0" % T)
    v("v_lshlrev_b32 v%d, 4, v%d" % (vRd, T))
    v("v_lshrrev_b32 v%d, 3, v%d" % (vPub, T))
    v("v_lshlrev_b32 v%d, 12, v%d" % (vPub, vPub))
    v("v_and_b32 v%d, 7, v%d" % (T+1, T))
    v("v_lshl_add_u32 v%d, v%d, 4, v%d" % (vPub, T+1, vPub))
    v("v_cmp_gt_u32 s[74:75], 160, v%d" % T) if False else v("v_cmp_gt_u32 vcc, 160, v%d" % T)
    s("s_mov_b64 s[74:75], vcc")
    s("s_mul_i32 %s, %s, %d" % (sPub, sG, 20*4096))
    s("s_lshl_b32 s15, %s, 7" % sH)
    s("s_add_u32 %s, %s, s15" % (sPub, sPub))
    s("s_add_u32 %s, %s, 1" % (sTag, sTag))
    s("s_and_b32 %s, %s, 0xff" % (sTag, sTag))
    v("v_mov_b32 v%d, 0xffffff00" % (T+6))
    v("v_mov_b32 v%d, %s" % (T+7, sTag))
    e.wait_vm("wo39")
    stamp(2)
    s("s_barrier")
    stamp(4)
    OP = XP
    for u in range(4):
        ds("ds_read_b32 v%d, v%d offset:%d" % (OP+u, vO, LDS_O + u*512))
    s("s_waitcnt lgkmcnt(2)")
    v("v_add_f32 v%d, v%d, v%d" % (OP, OP, OP+1))
    s("s_waitcnt lgkmcnt(0)")
    v("v_add_f32 v%d, v%d, v%d" % (OP+2, OP+2, OP+3))
    v("v_add_f32 v%d, v%d, v%d" % (OP, OP, OP+2))
    v("v_cvt_pk_bf16_f32 v%d, v%d, v%d" % (OP, OP, OP))
    buildA(0, OP, 0)
    for jj in range(8):
        if jj+1 < 8: buildA((jj+1) & 1, OP, jj+1)
        for ct in range(5):
            a = rng(ACO+4*ct, 4)
            v("v_mfma_f32_16x16x32_bf16 %s, %s, %s, %s" % (a, rng(AOP[jj & 1], 4), wreg(jj*5+ct), a if jj else "0"))
    s("s_mov_b32 exec_hi, 0")
    for ct in range(5):
        ds("ds_write_b128 v%d, %s offset:%d" % (vR, rng(ACO+4*ct, 4), LDS_R + ct*512))
    s("s_mov_b64 exec, s[74:75]")
    s("s_waitcnt lgkmcnt(0)")
    s("s_barrier")
    stamp(5)
    s("s_cbranch_execz L_done")
    for u in range(4):
        ds("ds_read_b128 %s, v%d offset:%d" % (rng(WR+4*u, 4), vRd, LDS_R + u*2560))
    s("s_waitcnt lgkmcnt(2)")
    v("v_pk_add_f32 %s, %s, %s" % (rng(WR, 2), rng(WR, 2), rng(WR+4, 2)))
    v("v_pk_add_f32 %s, %s, %s" % (rng(WR+2, 2), rng(WR+2, 2), rng(WR+6, 2)))
    s("s_waitcnt lgkmcnt(0)")
    v("v_pk_add_f32 %s, %s, %s" % (rng(WR+8, 2), rng(WR+8, 2), rng(WR+12, 2)))
    v("v_pk_add_f32 %s, %s, %s" % (rng(WR+10, 2), rng(WR+10, 2), rng(WR+14, 2)))
    v("v_pk_add_f32 %s, %s, %s" % (rng(WR, 2), rng(WR, 2), rng(WR+8, 2)))
    v("v_pk_add_f32 %s, %s, %s" % (rng(WR+2, 2), rng(WR+2, 2), rng(WR+10, 2)))
    for k in range(4):
        v("v_and_or_b32 v%d, v%d, v%d, v%d" % (WR+k, WR+k, T+6, T+7))
    e.ins("buffer_store_dwordx4 %s, v%d, %s, %s offen sc1" % (rng(WR, 4), vPub, WS_, sPub), r=[rng(WR, 4), "v%d" % vPub, sPub], kind='vmem')
    if stamps:
        e.label("L_stamps")
        s("s_waitcnt vmcnt(0)")
        stamp(6)
        s("s_waitcnt lgkmcnt(0)")
        s("s_cmp_eq_u32 %s, 4" % sW)
        s("s_cselect_b32 s15, 1, 0")
        s("s_cmp_eq_u32 %s, 0" % sW)
        s("s_cselect_b32 s14, 1, s15")
        s("s_cmp_eq_u32 s14, 0")
        s("s_cbranch_scc1 L_done")
        s("s_lshl_b32 s14, s18, 1")
        s("s_add_u32 s14, s14, s15")
        s("s_lshl_b32 s14, s14, 6")
        s("s_add_u32 s14, s14, %d" % STAMP_OFF)
        s("s_getreg_b32 s94, hwreg(HW_REG_XCC_ID)")
        s("s_mov_b64 exec, 1")
        v("v_mov_b32 v%d, 0" % T)
        for k in range(8):
            v("v_mov_b32 v%d, s%d" % (64+k, 80+2*k))
        e.ins("buffer_store_dwordx4 %s, v%d, %s, s14 offen" % (rng(64, 4), T, WS_), r=[rng(64, 4), "v%d" % T], kind='vmem')
        e.ins("buffer_store_dwordx4 %s, v%d, %s, s14 offen offset:16" % (rng(68, 4), T, WS_), r=[rng(68, 4), "v%d" % T], kind='vmem')
        if dbgwg:
            s("s_cmp_lg_u32 %s, 0" % sW)
            s("s_cbranch_scc1 L_done")
            s("s_mul_i32 s15, s2, 1009")
            s("s_lshr_b32 s15, s15, 16")
            s("s_mul_i32 s3, s15, 65")
            s("s_cmp_lg_u32 s3, s2")
            s("s_cbranch_scc1 L_done")
            s("s_load_dwordx2 s[48:49], s[0:1], 88")
            s("s_mov_b32 s50, 256"); s("s_mov_b32 s51, 0x20000")
            s("s_lshl_b32 s15, s15, 4")
            for k, src in enumerate((2, 3, 4, 6)):
                v("v_sub_u32 v%d, v%d, v64" % (72+k, 64+src))
            s("s_waitcnt lgkmcnt(0)")
            e.ins("buffer_store_dwordx4 v[72:75], v%d, s[48:51], s15 offen" % T, r=["v[72:75]", "v%d" % T], kind='vmem')
        if trace:
            s("s_mov_b64 exec, -1")
            s("s_sub_u32 s14, s14, %d" % STAMP_OFF)
            s("s_lshl_b32 s14, s14, 2")
            s("s_add_u32 s14, s14, %d" % TRACE_OFF)
            v("v_lshrrev_b32 v%d, 2, %s" % (T, vLane16))
            e.ins("buffer_store_dword v26, v%d, %s, s14 offen" % (T, WS_), r=["v26", "v%d" % T], kind='vmem')
    e.label("L_done")
    s("s_endpgm")
    nv = 224
    tail = ['.section .rodata,"a"', ".p2align 6", ".amdhsa_kernel %s" % name,
            "  .amdhsa_next_free_vgpr %d" % nv, "  .amdhsa_next_free_sgpr 100", "  .amdhsa_accum_offset %d" % nv,
            "  .amdhsa_group_segment_fixed_size 0", "  .amdhsa_kernarg_size 104", "  .amdhsa_user_sgpr_count 2",
            "  .amdhsa_user_sgpr_kernarg_segment_ptr 1", "  .amdhsa_system_sgpr_workgroup_id_x 1", ".end_amdhsa_kernel"]
    return "\n".join(hdr) + "\n" + e.text() + "\n".join(tail) + "\n"

def report(stm):
    import numpy as np
    rows = []
    cons = [g for g in range(256) if (g & 31) < 20]
    for st in stm:
        w0 = st[:, 0, :]; w4 = st[:, 1, :]; t0 = min(w0[:, 0].min(), w4[:, 0].min())
        d = (w0[:, :7] - t0)/100; h = (w4[:, :7] - t0)/100
        rows.append([d[:, 0].max(), np.median(d[:, 1]), np.median(h[:, 1]), h[:, 1].max(), np.median(d[:, 2]), d[:, 2].max(), np.median(h[:, 2]), h[:, 2].max(),
                     np.median(d[:, 3]), d[:, 3].max(), h[:, 4].min(), h[:, 4].mean(), h[:, 4].max(), np.median(h[:, 5]-h[:, 4]), h[:, 5].max(), h[:, 6].max(), d[cons, 6].max()])
    r = np.round(np.median(np.array(rows), axis=0), 2)
    print("   lastStart %.2f firstIssue %.2f | qpart med %.2f max %.2f | q-ready med %.2f max %.2f | wo landed med %.2f max %.2f | Kdone med %.2f max %.2f | Vdone min %.2f mean %.2f max %.2f | outproj dur %.2f done max %.2f | published max %.2f | final %.2f" % tuple(r))
    st = stm[-1]; xcc = st[:, 0, 7] & 7; t0 = st[:, 0, 0].min()
    print("   xcd mean Vdone:", [round(float(np.mean([(((s_[(s_[:, 0, 7] & 7) == x, 1, 4]-s_[:, 0, 0].min())/100).mean()) for s_ in stm])), 1) for x in range(8)])
def report_trace(stm, trc):
    import numpy as np
    acc = []
    for st, t in zip(stm, trc):
        t0 = min(st[:, 0, 0].min(), st[:, 1, 0].min())
        x = (t.astype(np.int64) - t0)/100.0
        x[t == 0] = np.nan
        acc.append(x)
    a = np.array(acc)
    for w, nm in ((0, "streamer"), (1, "helper")):
        m = np.nanmedian(np.nanmean(a[:, :, w, :], axis=1), axis=0)
        m = m[~np.isnan(m)]
        print("   %s mean trace:" % nm, np.round(m, 2).tolist())
        print("   %s diffs:" % nm, np.round(np.diff(m), 2).tolist())
if __name__ == "__main__":
    cfg = json.loads(sys.argv[2]) if len(sys.argv) > 2 else {}
    open(sys.argv[1], "w").write(gen(**cfg))
```

```python
import sys, math, json, struct
from asmlib import Em
NAME = "concat_heads__mha_block_cached__gqa_block_cached__decode_kernel"
def f2u(x): return struct.unpack("<I", struct.pack("<f", x))[0]
def bitrev4(i): return ((i & 1) << 3) | ((i & 2) << 1) | ((i & 4) >> 1) | ((i & 8) >> 3)
INBOX = 160*4096
EPOCH_OFF = INBOX
STAMP_OFF = INBOX + 4096
NSTAMP = 8
TRACE_OFF = STAMP_OFF + 256*2*64

def gen(D=(5,), xoff=0, kvflags="nt", wqflags="nt", woflags="nt", wqD=40, woD=4, stamps=False, pollsleep=2, wmap=0, trace=False, dbgwg=False, spin=None, name=NAME):
    if isinstance(D, int): D = (D,)
    e = Em()
    s, v, ds = e.s, e.v, e.ds
    LDS_Q, LDS_O, LDS_ML, LDS_R = 0, 2048, 4096, 4352
    LDS_BYTES = LDS_R + 4*2560
    hdr = []
    hdr.append("; @launch grid=(256,1,1) block=(512,1,1) lds=%d" % LDS_BYTES)
    hdr.append('.amdgcn_target "amdgcn-amd-amdhsa--gfx950"')
    hdr.append(".text\n.globl %s\n.p2align 8\n.type %s,@function\n%s:" % (name, name, name))
    KV_, WQ_, WO_, X_, WS_, OUT_ = "s[24:27]", "s[32:35]", "s[36:39]", "s[40:43]", "s[44:47]", "s[52:55]"
    sW, sH, sB, sBR, sK, sT, sG, sCnt = "s56", "s57", "s58", "s59", "s60", "s61", "s62", "s63"
    mB1, mB0 = "s[64:65]", "s[66:67]"
    sM, sL, sWO, sIn, sPub, sIt, sTag = "s68", "s69", "s70", "s71", "s72", "s73", "s76"
    sVlo, sVhi = "s28", "s29"
    vLane16, vG, vCc = "v1", "v2", "v3"
    MASK = [4, 5, 6, 7]
    AOP = [8, 12]
    vLdsW = 16
    T = 17
    def rng(a, n): return "v[%d:%d]" % (a, a+n-1)
    def stamp(k):
        if stamps: s("s_memrealtime s[%d:%d]" % (80+2*k, 81+2*k))
    def tr():
        if trace:
            s("s_memrealtime s[96:97]")
            s("s_waitcnt lgkmcnt(0)")
            s("s_mov_b32 m0, s79")
            e.ins("v_writelane_b32 v26, s96, m0", w=["v26"], r=["s96"], kind='valu')
            s("s_add_u32 s79, s79, 1")
    def buildA(buf, src, lane):
        for w in range(4):
            v("v_and_b32_dpp v%d, v%d, v%d row_newbcast:%d row_mask:0xf bank_mask:0xf" % (AOP[buf]+w, src, MASK[w], lane))
    def make_masks():
        v("v_and_b32 v%d, 1, %s" % (T, vCc))
        v("v_lshlrev_b32 v%d, 4, v%d" % (T, T))
        v("v_mov_b32 v%d, 0xffff" % (T+1))
        v("v_lshlrev_b32 v%d, v%d, v%d" % (T, T, T+1))
        v("v_lshrrev_b32 v%d, 1, %s" % (T+1, vCc))
        for w in range(4):
            v("v_cmp_eq_u32 vcc, %d, v%d" % (w, T+1))
            v("v_cndmask_b32_e32 v%d, 0, v%d, vcc" % (MASK[w], T))
        v("v_lshlrev_b32 v%d, 5, %s" % (T, vCc))
        v("v_lshl_add_u32 v%d, %s, 4, v%d" % (T, vG, T))
        s("s_and_b32 s15, %s, 3" % sW)
        s("s_lshl_b32 s15, s15, 9")
        v("v_add_u32 v%d, s15, v%d" % (vLdsW, T))
    s("s_cmp_ge_u32 s2, 256")
    s("s_cbranch_scc1 L_done")
    stamp(0)
    if wmap == 0:
        s("s_mov_b32 s18, s2")
    else:
        s("s_and_b32 s14, s2, 7")
        s("s_bfe_u32 s15, s2, 0x30003")
        s("s_lshr_b32 s19, s2, 6")
        if wmap == 1:
            s("s_lshr_b32 s18, s14, 2"); s("s_lshl_b32 s18, s18, 7")
            s("s_and_b32 s14, s14, 3"); s("s_lshl_b32 s14, s14, 3"); s("s_add_u32 s18, s18, s14"); s("s_add_u32 s18, s18, s15")
        elif wmap == 2:
            s("s_and_b32 s18, s14, 1"); s("s_lshl_b32 s18, s18, 7")
            s("s_lshr_b32 s14, s14, 1"); s("s_lshl_b32 s14, s14, 3"); s("s_add_u32 s18, s18, s14"); s("s_add_u32 s18, s18, s15")
        elif wmap == 3:
            s("s_add_u32 s14, s14, s15"); s("s_and_b32 s14, s14, 7")
            s("s_lshr_b32 s18, s15, 2"); s("s_lshl_b32 s18, s18, 7"); s("s_add_u32 s18, s18, s14")
            s("s_and_b32 s15, s15, 3"); s("s_lshl_b32 s15, s15, 3"); s("s_add_u32 s18, s18, s15")
        s("s_lshl_b32 s19, s19, 5"); s("s_add_u32 s18, s18, s19")
    s("s_lshr_b32 %s, s18, 7" % sBR)
    s("s_mul_i32 s3, %s, 40" % sBR)
    s("s_load_dwordx8 s[4:11], s[0:1], s3")
    s("s_add_u32 s3, s3, 32")
    s("s_load_dwordx2 s[12:13], s[0:1], s3")
    s("s_load_dwordx2 s[16:17], s[0:1], 80")
    s("s_load_dwordx2 s[20:21], s[0:1], 96")
    v("v_lshrrev_b32 v%d, 6, v0" % T)
    v("v_and_b32 v%d, 63, v0" % (T+1))
    v("v_readfirstlane_b32 %s, v%d" % (sW, T))
    v("v_lshlrev_b32 %s, 4, v%d" % (vLane16, T+1))
    v("v_lshrrev_b32 %s, 4, v%d" % (vG, T+1))
    v("v_and_b32 %s, 15, v0" % vCc)
    s("s_and_b32 %s, s18, 31" % sH)
    s("s_lshr_b32 %s, s18, 5" % sG)
    s("s_and_b32 %s, %s, 3" % (sB, sG))
    s("s_mov_b32 s46, 0x%x" % (TRACE_OFF + 256*2*256))
    if trace:
        v("v_mov_b32 v26, 0")
        s("s_mov_b32 s79, 0")
    s("s_mov_b32 s47, 0x20000")
    s("s_cmp_ge_u32 %s, 4" % sW)
    s("s_cbranch_scc1 L_helper")
    Q, S, Pp, Pa, Pb, Pc, Pt, ACC, vC = 28, 32, 48, 52, 54, 56, 58, 60, 27
    RING, R = 64, 32
    s("s_and_b32 s14, s18, 127")
    s("s_lshl_b32 s14, s14, 20")
    s("s_mov_b32 s26, 0x100000")
    s("s_mov_b32 s27, 0x20000")
    s("s_lshl_b32 %s, %s, 12" % (sK, sW))
    if xoff:
        s("s_and_b32 s15, s2, 7")
        s("s_mul_i32 s15, s15, %d" % (xoff*4096))
        s("s_add_u32 %s, %s, s15" % (sK, sK))
    s("s_mov_b32 %s, 0" % sCnt)
    s("s_waitcnt lgkmcnt(0)")
    s("s_add_u32 s24, s6, s14"); s("s_addc_u32 s25, s7, 0")
    slot_of = lambda n: n % 32 if n < 56 else 16 + (n - 48) % 16
    def slot(n): return rng(RING + 4*slot_of(n), 4)
    issued = [0]
    def issue_kv(pace=True):
        m = issued[0]; issued[0] += 1
        d = D[m % len(D)]
        if pace and m - d >= 0: e.wait_vm("kv%d" % (m - d))
        e.load("buffer_load_dwordx4", slot(m), vLane16, KV_, sK, (m % 4)*1024, kvflags, tag="kv%d" % m)
        if m % 4 == 3:
            s("s_add_u32 %s, %s, 0x4000" % (sK, sK))
            s("s_and_b32 %s, %s, 0xfffff" % (sK, sK))
            if m >= 48:
                s("s_add_u32 %s, %s, 1" % (sCnt, sCnt))
                s("s_cmp_eq_u32 %s, %d" % (sCnt, 64 - 12))
                s("s_cselect_b32 s24, %s, s24" % sVlo)
                s("s_cselect_b32 s25, %s, s25" % sVhi)
    for m in range(max(D)): issue_kv()
    stamp(1)
    s("s_add_u32 %s, s8, s14" % sVlo); s("s_addc_u32 %s, s9, 0" % sVhi)
    s("s_mov_b32 s44, s20"); s("s_mov_b32 s45, s21")
    s("s_lshl_b32 s78, %s, 7" % sG)
    s("s_add_u32 s78, s78, %d" % EPOCH_OFF)
    s("s_load_dword %s, s[20:21], s78" % sTag)
    s("s_mov_b32 s64, 0xcccccccc"); s("s_mov_b32 s65, 0xcccccccc")
    s("s_mov_b32 s66, 0xaaaaaaaa"); s("s_mov_b32 s67, 0xaaaaaaaa")
    make_masks()
    v("v_mov_b32 v%d, 0x%08x" % (vC, f2u(math.log2(math.e)/math.sqrt(128.0))))
    v("v_lshlrev_b32 v%d, 5, %s" % (T, vCc))
    while issued[0] < R - 2:
        if issued[0] % 6 == 0: tr()
        issue_kv()
    tr()
    s("s_barrier")
    QT = S
    for u in range(4):
        ds("ds_read_b128 %s, v%d offset:%d" % (rng(QT+8*u, 4), T, LDS_Q + u*512))
        ds("ds_read_b128 %s, v%d offset:%d" % (rng(QT+8*u+4, 4), T, LDS_Q + u*512 + 16))
    issue_kv()
    for u in range(1, 4):
        s("s_waitcnt lgkmcnt(%d)" % (6 - 2*u))
        for k in range(0, 8, 2):
            v("v_pk_add_f32 %s, %s, %s" % (rng(QT+k, 2), rng(QT+k, 2), rng(QT+8*u+k, 2)))
    issue_kv()
    for k in range(4):
        v("v_cvt_pk_bf16_f32 v%d, v%d, v%d" % (Q+k, QT+2*k, QT+2*k+1))
    stamp(2)
    pend = []
    def lvlA(n):
        i = n % 16
        d = Pa + ((i >> 1) & 1)
        v("v_add_f32_dpp v%d, v%d, v%d row_ror:8 row_mask:0xf bank_mask:0x3" % (d, Pp+(n-1) % 4, Pp+(n-1) % 4))
        v("v_add_f32_dpp v%d, v%d, v%d row_ror:8 row_mask:0xf bank_mask:0xc" % (d, Pp+n % 4, Pp+n % 4))
        if i % 4 == 3: pend.append(("B", n))
    def lvlB(n):
        i = n % 16
        d = Pb + ((i >> 2) & 1)
        v("v_add_f32_dpp v%d, v%d, v%d row_half_mirror row_mask:0xf bank_mask:0x5" % (d, Pa, Pa))
        v("v_add_f32_dpp v%d, v%d, v%d row_half_mirror row_mask:0xf bank_mask:0xa" % (d, Pa+1, Pa+1))
        if i % 8 == 7: pend.append(("C", n))
    def lvlC(n):
        i = n % 16
        d = Pc + ((i >> 3) & 1)
        v("v_add_f32_dpp v%d, v%d, v%d quad_perm:[2,3,0,1] row_mask:0xf bank_mask:0xf" % (Pt, Pb, Pb))
        v("v_add_f32_dpp v%d, v%d, v%d quad_perm:[2,3,0,1] row_mask:0xf bank_mask:0xf" % (Pt+1, Pb+1, Pb+1))
        v("v_cndmask_b32_e64 v%d, v%d, v%d, %s" % (d, Pt, Pt+1, mB1))
        if i == 15: pend.append(("D", n))
    def lvlD(n):
        v("v_add_f32_dpp v%d, v%d, v%d quad_perm:[1,0,3,2] row_mask:0xf bank_mask:0xf" % (Pt, Pc, Pc))
        v("v_add_f32_dpp v%d, v%d, v%d quad_perm:[1,0,3,2] row_mask:0xf bank_mask:0xf" % (Pt+1, Pc+1, Pc+1))
        for k in range(15): v("v_mov_b32 v%d, v%d" % (S+k, S+k+1))
        v("v_cndmask_b32_e64 v%d, v%d, v%d, %s" % (S+15, Pt, Pt+1, mB0))
    def run_pend():
        k, n = pend.pop(0)
        {"A": lvlA, "B": lvlB, "C": lvlC, "D": lvlD}[k](n)
    def kstep(n, do_issue):
        if do_issue: issue_kv()
        e.wait_vm("kv%d" % n)
        base = RING + 4*slot_of(n)
        p = Pp + n % 4
        v("v_dot2_f32_bf16 v%d, v%d, v%d, 0" % (p, base, Q))
        for k in range(1, 4):
            v("v_dot2_f32_bf16 v%d, v%d, v%d, v%d" % (p, base+k, Q+k, p))
        if pend: run_pend()
        if n % 2 == 1: pend.append(("A", n))
    for n in range(48):
        if n % 16 == 0: tr()
        kstep(n, n % 2 == 1)
    assert issued[0] == 56
    st0 = [(k, n % 16) for k, n in pend]
    s("s_mov_b32 %s, 13" % sIt)
    e.fence()
    e.label("L_kloop")
    tr()
    for n in range(48, 64): kstep(n, True)
    assert st0 == [(k, n % 16) for k, n in pend]
    s("s_sub_u32 %s, %s, 1" % (sIt, sIt))
    s("s_cmp_lg_u32 %s, 0" % sIt)
    e.fence()
    s("s_cbranch_scc1 L_kloop")
    issue_kv()
    while pend: run_pend()
    stamp(3)
    v("v_max3_f32 v%d, v%d, v%d, v%d" % (T, S, S+1, S+2))
    for k in range(3, 15, 2):
        v("v_max3_f32 v%d, v%d, v%d, v%d" % (T, T, S+k, S+k+1))
    v("v_max_f32 v%d, v%d, v%d" % (T, T, S+15))
    def wave_reduce(op, r, dst):
        for sh in (8, 4, 2, 1):
            v("%s_dpp v%d, v%d, v%d row_ror:%d row_mask:0xf bank_mask:0xf" % (op, r, r, r, sh))
        v("%s_dpp v%d, v%d, v%d row_bcast:15 row_mask:0xa bank_mask:0xf" % (op, r, r, r))
        v("%s_dpp v%d, v%d, v%d row_bcast:31 row_mask:0xc bank_mask:0xf" % (op, r, r, r))
        v("v_readlane_b32 %s, v%d, 63" % (dst, r))
    wave_reduce("v_max_f32", T, sM)
    issue_kv()
    vM = T+3
    v("v_mul_f32 v%d, %s, v%d" % (vM, sM, vC))
    for k in range(16):
        v("v_fma_f32 v%d, v%d, v%d, -v%d" % (S+k, S+k, vC, vM))
    for k in range(16):
        v("v_exp_f32 v%d, v%d" % (S+k, S+k))
    issue_kv()
    v("v_add_f32 v%d, v%d, v%d" % (T, S, S+1))
    for k in range(2, 16):
        v("v_add_f32 v%d, v%d, v%d" % (T, T, S+k))
    for k in range(16):
        v("v_cvt_pk_bf16_f32 v%d, v%d, v%d" % (S+k, S+k, S+k))
    wave_reduce("v_add_f32", T, sL)
    issue_kv()
    v("v_mov_b32 v%d, %s" % (vM+1, sL))
    s("s_lshl_b32 s15, %s, 3" % sW)
    v("v_mov_b32 v%d, s15" % T)
    s("s_mov_b64 exec, 1")
    ds("ds_write_b64 v%d, %s offset:%d" % (T, rng(vM, 2), LDS_ML))
    s("s_mov_b64 exec, -1")
    for k in range(4): v("v_mov_b32 v%d, 0" % (ACC+k))
    buildA(0, S, bitrev4(0))
    base_n = 64
    s("s_mov_b32 %s, 15" % sIt)
    e.fence()
    def vbody(last):
        for i in range(16):
            n = base_n + i
            if issued[0] < 96: issue_kv()
            e.wait_vm("kv%d" % n)
            v("v_mfma_f32_16x16x32_bf16 %s, %s, %s, %s" % (rng(ACC, 4), rng(AOP[i & 1], 4), slot(n), rng(ACC, 4)))
            if i < 15: buildA((i+1) & 1, S, bitrev4(i+1))
            elif not last:
                buildA(0, S+1, bitrev4(0))
                for k in range(15): v("v_mov_b32 v%d, v%d" % (S+k, S+k+1))
    e.label("L_vloop")
    tr()
    vbody(False)
    s("s_sub_u32 %s, %s, 1" % (sIt, sIt))
    s("s_cmp_lg_u32 %s, 0" % sIt)
    e.fence()
    s("s_cbranch_scc1 L_vloop")
    ML = Pp
    v("v_mov_b32 v%d, 0" % T)
    s("s_mov_b32 %s, 0" % sIt)
    issue_kv()
    e.label("L_ml")
    ds("ds_read_b128 %s, v%d offset:%d" % (rng(ML, 4), T, LDS_ML))
    ds("ds_read_b128 %s, v%d offset:%d" % (rng(ML+4, 4), T, LDS_ML + 16))
    s("s_waitcnt lgkmcnt(0)")
    v("v_min_u32 v%d, v%d, v%d" % (T+1, ML+1, ML+3))
    v("v_min3_u32 v%d, v%d, v%d, v%d" % (T+1, T+1, ML+5, ML+7))
    s("s_add_u32 %s, %s, 1" % (sIt, sIt))
    v("v_readfirstlane_b32 s15, v%d" % (T+1))
    s("s_cmp_ge_u32 %s, 0x100000" % sIt)
    s("s_cbranch_scc1 L_ml_ok")
    s("s_cmp_eq_u32 s15, 0")
    s("s_cbranch_scc1 L_ml")
    e.label("L_ml_ok")
    issue_kv()
    v("v_max3_f32 v%d, v%d, v%d, v%d" % (T+1, ML, ML+2, ML+4))
    v("v_max_f32 v%d, v%d, v%d" % (T+1, T+1, ML+6))
    for u in range(4): v("v_sub_f32 v%d, v%d, v%d" % (ML+2*u, ML+2*u, T+1))
    v("v_sub_f32 v%d, v%d, v%d" % (vM, vM, T+1))
    for u in range(4): v("v_exp_f32 v%d, v%d" % (ML+2*u, ML+2*u))
    v("v_exp_f32 v%d, v%d" % (vM, vM))
    v("v_mul_f32 v%d, v%d, v%d" % (T+1, ML, ML+1))
    for u in range(1, 4): v("v_fmac_f32 v%d, v%d, v%d" % (T+1, ML+2*u, ML+2*u+1))
    v("v_rcp_f32 v%d, v%d" % (T+1, T+1))
    v("v_mul_f32 v%d, v%d, v%d" % (vM, vM, T+1))
    base_n = 80
    tr()
    vbody(True)
    tr()
    stamp(4)
    for k in range(4): v("v_mul_f32 v%d, v%d, v%d" % (ACC+k, ACC+k, vM))
    s("s_mov_b32 exec_hi, 0")
    ds("ds_write_b128 v%d, %s offset:%d" % (vLdsW, rng(ACC, 4), LDS_O))
    s("s_mov_b64 exec, -1")
    s("s_waitcnt lgkmcnt(0)")
    s("s_barrier")
    s("s_cmp_lg_u32 %s, 0" % sW)
    s("s_cbranch_scc1 L_done")
    if not stamps:
        s("s_cmp_ge_u32 %s, 20" % sH)
        s("s_cbranch_scc1 L_done")
    s("s_mul_i32 %s, %s, 20" % (sIn, sG))
    s("s_add_u32 %s, %s, %s" % (sIn, sIn, sH))
    s("s_lshl_b32 %s, %s, 12" % (sIn, sIn))
    s("s_mov_b32 s52, s16"); s("s_mov_b32 s53, s17"); s("s_mov_b32 s54, %d" % (4*2560)); s("s_mov_b32 s55, 0x20000")
    s("s_mul_i32 s14, %s, 2560" % sB)
    s("s_mul_i32 s3, %s, 1280" % sBR)
    s("s_add_u32 s14, s14, s3")
    s("s_lshl_b32 s3, %s, 6" % sH)
    s("s_add_u32 s14, s14, s3")
    v("v_lshrrev_b32 v%d, 1, %s" % (T+2, vLane16))
    v("v_mov_b32 v%d, 0" % (T+4))
    s("s_mov_b32 %s, 0" % sIt)
    s("s_add_u32 %s, %s, 1" % (sTag, sTag))
    s("s_and_b32 s77, %s, 0xff" % sTag)
    s("s_barrier")
    if stamps:
        s("s_cmp_ge_u32 %s, 20" % sH)
        s("s_cbranch_scc1 L_stamps")
    G0 = RING
    e.label("L_poll")
    for k in range(4):
        e.ins("buffer_load_dwordx4 %s, %s, %s, %s offen offset:%d sc1" % (rng(G0+4*k, 4), vLane16, WS_, sIn, k*1024), w=[rng(G0+4*k, 4)], r=[vLane16, sIn], kind='vmem')
    s("s_waitcnt vmcnt(0)")
    for k in range(16):
        v("v_xor_b32 v%d, s77, v%d" % (G0+k, G0+k))
    v("v_or_b32 v%d, v%d, v%d" % (T, G0, G0+1))
    for k in range(2, 16, 2):
        v("v_or3_b32 v%d, v%d, v%d, v%d" % (T, T, G0+k, G0+k+1))
    v("v_and_b32 v%d, 0xff, v%d" % (T, T))
    v("v_cmp_ne_u32 vcc, 0, v%d" % T)
    s("s_add_u32 %s, %s, 1" % (sIt, sIt))
    s("s_cmp_ge_u32 %s, 0x40000" % sIt)
    s("s_cbranch_scc1 L_poll_ok")
    e.ins("s_cbranch_vccz L_poll_ok", r=["vcc"], kind='salu')
    if pollsleep: s("s_sleep %d" % pollsleep)
    s("s_branch L_poll")
    e.label("L_poll_ok")
    for k in range(1, 4):
        v("v_pk_add_f32 %s, %s, %s" % (rng(G0, 2), rng(G0, 2), rng(G0+4*k, 2)))
        v("v_pk_add_f32 %s, %s, %s" % (rng(G0+2, 2), rng(G0+2, 2), rng(G0+4*k+2, 2)))
    for k in range(4):
        v("v_add_f32_dpp v%d, v%d, v%d row_ror:8 row_mask:0xf bank_mask:0xf" % (G0+k, G0+k, G0+k))
    for sw in ("v_permlane16_swap_b32", "v_permlane32_swap_b32"):
        for k in range(4): v("v_mov_b32 v%d, v%d" % (G0+4+k, G0+k))
        for k in range(4): v("%s v%d, v%d" % (sw, G0+k, G0+4+k))
        for k in range(4): v("v_add_f32 v%d, v%d, v%d" % (G0+k, G0+k, G0+4+k))
    v("v_cvt_pk_bf16_f32 v%d, v%d, v%d" % (G0, G0, G0+1))
    v("v_cvt_pk_bf16_f32 v%d, v%d, v%d" % (G0+1, G0+2, G0+3))
    v("v_mov_b32 v%d, %s" % (T+3, sTag))
    s("s_mov_b64 exec, 0xff")
    e.ins("buffer_store_dwordx2 %s, v%d, %s, s14 offen" % (rng(G0, 2), T+2, OUT_), r=[rng(G0, 2), "v%d" % (T+2), "s14"], kind='vmem')
    s("s_cmp_lg_u32 %s, 0" % sH)
    s("s_cbranch_scc1 %s" % ("L_stamps" if stamps else "L_done"))
    s("s_mov_b64 exec, 1")
    e.ins("buffer_store_dword v%d, v%d, %s, s78 offen sc1" % (T+3, T+4, WS_), r=["v%d" % (T+3), "v%d" % (T+4), "s78"], kind='vmem')
    if stamps: s("s_branch L_stamps")
    s("s_endpgm")
    e.fence()
    e.label("L_helper")
    e.vm = []; e.vm_done = -1
    XP, ACO, WR = 28, 32, 64
    vWQ, vWO, vX = 52, 53, 54
    def wreg(j): return rng(WR + 4*j, 4)
    s("s_sub_u32 s22, %s, 4" % sW)
    s("s_mov_b32 s34, 0x%x" % (640*8192)); s("s_mov_b32 s35, 0x20000")
    s("s_mov_b32 s42, 0x%x" % (4*1280)); s("s_mov_b32 s43, 0x20000")
    v("v_lshlrev_b32 v%d, 4, %s" % (T+2, vCc))
    v("v_lshl_add_u32 v%d, %s, 13, v%d" % (vWQ, vG, T+2))
    v("v_lshl_add_u32 v%d, %s, 2, %s" % (vX, vCc, vG))
    v("v_lshlrev_b32 v%d, 1, v%d" % (vX, vX))
    s("s_mul_i32 s15, s22, %d" % (160*8192))
    s("s_lshl_b32 %s, %s, 8" % (sT, sH))
    s("s_add_u32 %s, %s, s15" % (sT, sT))
    s("s_mul_i32 s14, %s, 1280" % sB)
    s("s_mul_i32 s15, s22, 320")
    s("s_add_u32 s14, s14, s15")
    s("s_lshl_b32 s23, %s, 7" % sG)
    s("s_add_u32 s23, s23, %d" % EPOCH_OFF)
    s("s_waitcnt lgkmcnt(0)")
    s("s_mov_b32 s32, s10"); s("s_mov_b32 s33, s11")
    s("s_mov_b32 s40, s4"); s("s_mov_b32 s41, s5")
    for k in range(3):
        e.load("buffer_load_ushort", "v%d" % (XP+k), "v%d" % vX, X_, "s14", 128*k, "", tag="x%d" % k)
    wq_issued = [0]
    def issue_wq():
        j = wq_issued[0]
        if j >= 40: return
        wq_issued[0] += 1
        e.load("buffer_load_dwordx4", wreg(j), "v%d" % vWQ, WQ_, sT, 0, wqflags, tag="wq%d" % j)
        s("s_add_u32 %s, %s, 0x8000" % (sT, sT))
    for j in range(wqD): issue_wq()
    s("s_load_dword %s, s[20:21], s23" % sTag)
    s("s_mov_b32 s44, s20"); s("s_mov_b32 s45, s21")
    s("s_mov_b32 s36, s12"); s("s_mov_b32 s37, s13"); s("s_mov_b32 s38, 0x%x" % (4096*1280)); s("s_mov_b32 s39, 0x20000")
    s("s_lshl_b32 %s, %s, 7" % (sWO, sH))
    s("s_lshl_b32 s15, s22, 5")
    s("s_add_u32 %s, %s, s15" % (sWO, sWO))
    s("s_mul_i32 %s, %s, 1280" % (sWO, sWO))
    v("v_mul_u32_u24 v%d, 1280, %s" % (T, vG))
    v("v_add_u32 v%d, v%d, v%d" % (vWO, T, T+2))
    make_masks()
    v("v_mov_b32 v%d, 0" % T)
    v("v_lshlrev_b32 v%d, 2, %s" % (T+1, vCc))
    ds("ds_write_b32 v%d, v%d offset:%d" % (T+1, T, LDS_ML))
    tr()
    e.wait_vm("x2")
    tr()
    for k in range(3): v("v_lshl_or_b32 v%d, v%d, 16, v%d" % (XP+k, XP+k, XP+k))
    buildA(0, XP, 0)
    for j in range(40):
        if j+1 < 40: buildA((j+1) & 1, XP + (j+1)//16, (j+1) % 16)
        e.wait_vm("wq%d" % j)
        if j % 4 == 0 or j == 39: tr()
        v("v_mfma_f32_16x16x32_bf16 %s, %s, %s, %s" % (rng(ACO, 4), rng(AOP[j & 1], 4), wreg(j), rng(ACO, 4) if j else "0"))
        issue_wq()
    s("s_mov_b32 exec_hi, 0")
    ds("ds_write_b128 v%d, %s offset:%d" % (vLdsW, rng(ACO, 4), LDS_Q))
    s("s_mov_b64 exec, -1")
    s("s_waitcnt lgkmcnt(0)")
    stamp(1)
    s("s_barrier")
    for j in range(40):
        if j - woD >= 0: e.wait_vm("wo%d" % (j - woD))
        if j % 8 == 0: tr()
        e.load("buffer_load_dwordx4", wreg(j), "v%d" % vWO, WO_, sWO, (j % 5)*256, woflags, tag="wo%d" % j)
        if j % 5 == 4: s("s_add_u32 %s, %s, %d" % (sWO, sWO, 4*1280))
    vO, vR, vRd, vPub = T+2, T+3, T+4, T+5
    v("v_and_b32 v%d, 7, %s" % (vO, vCc))
    v("v_lshl_add_u32 v%d, v%d, 2, %s" % (vO, vO, vG))
    v("v_lshlrev_b32 v%d, 2, v%d" % (vO, vO))
    s("s_lshl_b32 s15, s22, 7")
    v("v_add_u32 v%d, s15, v%d" % (vO, vO))
    s("s_mul_i32 s15, s22, %d" % (2560-512))
    v("v_add_u32 v%d, s15, v%d" % (vR, vLdsW))
    v("v_subrev_u32 v%d, 256, v0" % T)
    v("v_lshlrev_b32 v%d, 4, v%d" % (vRd, T))
    v("v_lshrrev_b32 v%d, 3, v%d" % (vPub, T))
    v("v_lshlrev_b32 v%d, 12, v%d" % (vPub, vPub))
    v("v_and_b32 v%d, 7, v%d" % (T+1, T))
    v("v_lshl_add_u32 v%d, v%d, 4, v%d" % (vPub, T+1, vPub))
    v("v_cmp_gt_u32 s[74:75], 160, v%d" % T) if False else v("v_cmp_gt_u32 vcc, 160, v%d" % T)
    s("s_mov_b64 s[74:75], vcc")
    s("s_mul_i32 %s, %s, %d" % (sPub, sG, 20*4096))
    s("s_lshl_b32 s15, %s, 7" % sH)
    s("s_add_u32 %s, %s, s15" % (sPub, sPub))
    s("s_add_u32 %s, %s, 1" % (sTag, sTag))
    s("s_and_b32 %s, %s, 0xff" % (sTag, sTag))
    v("v_mov_b32 v%d, 0xffffff00" % (T+6))
    v("v_mov_b32 v%d, %s" % (T+7, sTag))
    e.wait_vm("wo39")
    stamp(2)
    s("s_barrier")
    stamp(4)
    OP = XP
    for u in range(4):
        ds("ds_read_b32 v%d, v%d offset:%d" % (OP+u, vO, LDS_O + u*512))
    s("s_waitcnt lgkmcnt(2)")
    v("v_add_f32 v%d, v%d, v%d" % (OP, OP, OP+1))
    s("s_waitcnt lgkmcnt(0)")
    v("v_add_f32 v%d, v%d, v%d" % (OP+2, OP+2, OP+3))
    v("v_add_f32 v%d, v%d, v%d" % (OP, OP, OP+2))
    v("v_cvt_pk_bf16_f32 v%d, v%d, v%d" % (OP, OP, OP))
    buildA(0, OP, 0)
    for jj in range(8):
        if jj+1 < 8: buildA((jj+1) & 1, OP, jj+1)
        for ct in range(5):
            a = rng(ACO+4*ct, 4)
            v("v_mfma_f32_16x16x32_bf16 %s, %s, %s, %s" % (a, rng(AOP[jj & 1], 4), wreg(jj*5+ct), a if jj else "0"))
    s("s_mov_b32 exec_hi, 0")
    for ct in range(5):
        ds("ds_write_b128 v%d, %s offset:%d" % (vR, rng(ACO+4*ct, 4), LDS_R + ct*512))
    s("s_mov_b64 exec, s[74:75]")
    s("s_waitcnt lgkmcnt(0)")
    s("s_barrier")
    stamp(5)
    s("s_cbranch_execz L_done")
    for u in range(4):
        ds("ds_read_b128 %s, v%d offset:%d" % (rng(WR+4*u, 4), vRd, LDS_R + u*2560))
    s("s_waitcnt lgkmcnt(2)")
    v("v_pk_add_f32 %s, %s, %s" % (rng(WR, 2), rng(WR, 2), rng(WR+4, 2)))
    v("v_pk_add_f32 %s, %s, %s" % (rng(WR+2, 2), rng(WR+2, 2), rng(WR+6, 2)))
    s("s_waitcnt lgkmcnt(0)")
    v("v_pk_add_f32 %s, %s, %s" % (rng(WR+8, 2), rng(WR+8, 2), rng(WR+12, 2)))
    v("v_pk_add_f32 %s, %s, %s" % (rng(WR+10, 2), rng(WR+10, 2), rng(WR+14, 2)))
    v("v_pk_add_f32 %s, %s, %s" % (rng(WR, 2), rng(WR, 2), rng(WR+8, 2)))
    v("v_pk_add_f32 %s, %s, %s" % (rng(WR+2, 2), rng(WR+2, 2), rng(WR+10, 2)))
    for k in range(4):
        v("v_and_or_b32 v%d, v%d, v%d, v%d" % (WR+k, WR+k, T+6, T+7))
    e.ins("buffer_store_dwordx4 %s, v%d, %s, %s offen sc1" % (rng(WR, 4), vPub, WS_, sPub), r=[rng(WR, 4), "v%d" % vPub, sPub], kind='vmem')
    if stamps:
        e.label("L_stamps")
        s("s_waitcnt vmcnt(0)")
        stamp(6)
        s("s_waitcnt lgkmcnt(0)")
        s("s_cmp_eq_u32 %s, 4" % sW)
        s("s_cselect_b32 s15, 1, 0")
        s("s_cmp_eq_u32 %s, 0" % sW)
        s("s_cselect_b32 s14, 1, s15")
        s("s_cmp_eq_u32 s14, 0")
        s("s_cbranch_scc1 L_done")
        s("s_lshl_b32 s14, s18, 1")
        s("s_add_u32 s14, s14, s15")
        s("s_lshl_b32 s14, s14, 6")
        s("s_add_u32 s14, s14, %d" % STAMP_OFF)
        s("s_getreg_b32 s94, hwreg(HW_REG_XCC_ID)")
        s("s_mov_b64 exec, 1")
        v("v_mov_b32 v%d, 0" % T)
        for k in range(8):
            v("v_mov_b32 v%d, s%d" % (64+k, 80+2*k))
        e.ins("buffer_store_dwordx4 %s, v%d, %s, s14 offen" % (rng(64, 4), T, WS_), r=[rng(64, 4), "v%d" % T], kind='vmem')
        e.ins("buffer_store_dwordx4 %s, v%d, %s, s14 offen offset:16" % (rng(68, 4), T, WS_), r=[rng(68, 4), "v%d" % T], kind='vmem')
        if spin is not None:
            s("s_cmp_lg_u32 %s, 0" % sW)
            s("s_cbranch_scc1 L_done")
            s("s_cmp_lg_u32 s2, 0")
            s("s_cbranch_scc1 L_done")
            s("s_sub_u32 s15, s%d, s80" % (80+2*spin))
            s("s_min_u32 s15, s15, 20000")
            s("s_mul_i32 s15, s15, 10")
            e.label("L_spin")
            s("s_memrealtime s[96:97]")
            s("s_waitcnt lgkmcnt(0)")
            s("s_sub_u32 s3, s96, s92")
            s("s_cmp_lt_u32 s3, s15")
            s("s_cbranch_scc1 L_spin")
        if dbgwg:
            s("s_cmp_lg_u32 %s, 0" % sW)
            s("s_cbranch_scc1 L_done")
            s("s_mul_i32 s15, s2, 1009")
            s("s_lshr_b32 s15, s15, 16")
            s("s_mul_i32 s3, s15, 65")
            s("s_cmp_lg_u32 s3, s2")
            s("s_cbranch_scc1 L_done")
            s("s_load_dwordx2 s[48:49], s[0:1], 88")
            s("s_mov_b32 s50, 256"); s("s_mov_b32 s51, 0x20000")
            s("s_lshl_b32 s15, s15, 4")
            for k, src in enumerate((2, 3, 4, 6)):
                v("v_sub_u32 v%d, v%d, v64" % (72+k, 64+src))
            s("s_waitcnt lgkmcnt(0)")
            e.ins("buffer_store_dwordx4 v[72:75], v%d, s[48:51], s15 offen" % T, r=["v[72:75]", "v%d" % T], kind='vmem')
        if trace:
            s("s_mov_b64 exec, -1")
            s("s_sub_u32 s14, s14, %d" % STAMP_OFF)
            s("s_lshl_b32 s14, s14, 2")
            s("s_add_u32 s14, s14, %d" % TRACE_OFF)
            v("v_lshrrev_b32 v%d, 2, %s" % (T, vLane16))
            e.ins("buffer_store_dword v26, v%d, %s, s14 offen" % (T, WS_), r=["v26", "v%d" % T], kind='vmem')
    e.label("L_done")
    s("s_endpgm")
    nv = 224
    tail = ['.section .rodata,"a"', ".p2align 6", ".amdhsa_kernel %s" % name,
            "  .amdhsa_next_free_vgpr %d" % nv, "  .amdhsa_next_free_sgpr 100", "  .amdhsa_accum_offset %d" % nv,
            "  .amdhsa_group_segment_fixed_size 0", "  .amdhsa_kernarg_size 104", "  .amdhsa_user_sgpr_count 2",
            "  .amdhsa_user_sgpr_kernarg_segment_ptr 1", "  .amdhsa_system_sgpr_workgroup_id_x 1", ".end_amdhsa_kernel"]
    return "\n".join(hdr) + "\n" + e.text() + "\n".join(tail) + "\n"

def report(stm):
    import numpy as np
    rows = []
    cons = [g for g in range(256) if (g & 31) < 20]
    for st in stm:
        w0 = st[:, 0, :]; w4 = st[:, 1, :]; t0 = min(w0[:, 0].min(), w4[:, 0].min())
        d = (w0[:, :7] - t0)/100; h = (w4[:, :7] - t0)/100
        rows.append([d[:, 0].max(), np.median(d[:, 1]), np.median(h[:, 1]), h[:, 1].max(), np.median(d[:, 2]), d[:, 2].max(), np.median(h[:, 2]), h[:, 2].max(),
                     np.median(d[:, 3]), d[:, 3].max(), h[:, 4].min(), h[:, 4].mean(), h[:, 4].max(), np.median(h[:, 5]-h[:, 4]), h[:, 5].max(), h[:, 6].max(), d[cons, 6].max()])
    r = np.round(np.median(np.array(rows), axis=0), 2)
    print("   lastStart %.2f firstIssue %.2f | qpart med %.2f max %.2f | q-ready med %.2f max %.2f | wo landed med %.2f max %.2f | Kdone med %.2f max %.2f | Vdone min %.2f mean %.2f max %.2f | outproj dur %.2f done max %.2f | published max %.2f | final %.2f" % tuple(r))
    st = stm[-1]; xcc = st[:, 0, 7] & 7; t0 = st[:, 0, 0].min()
    print("   xcd mean Vdone:", [round(float(np.mean([(((s_[(s_[:, 0, 7] & 7) == x, 1, 4]-s_[:, 0, 0].min())/100).mean()) for s_ in stm])), 1) for x in range(8)])
def report_trace(stm, trc):
    import numpy as np
    acc = []
    for st, t in zip(stm, trc):
        t0 = min(st[:, 0, 0].min(), st[:, 1, 0].min())
        x = (t.astype(np.int64) - t0)/100.0
        x[t == 0] = np.nan
        acc.append(x)
    a = np.array(acc)
    for w, nm in ((0, "streamer"), (1, "helper")):
        m = np.nanmedian(np.nanmean(a[:, :, w, :], axis=1), axis=0)
        m = m[~np.isnan(m)]
        print("   %s mean trace:" % nm, np.round(m, 2).tolist())
        print("   %s diffs:" % nm, np.round(np.diff(m), 2).tolist())
if __name__ == "__main__":
    cfg = json.loads(sys.argv[2]) if len(sys.argv) > 2 else {}
    open(sys.argv[1], "w").write(gen(**cfg))
```

```python
import sys, math, json, struct
from asmlib import Em
NAME = "concat_heads__mha_block_cached__gqa_block_cached__decode_kernel"
def f2u(x): return struct.unpack("<I", struct.pack("<f", x))[0]
def bitrev4(i): return ((i & 1) << 3) | ((i & 2) << 1) | ((i & 4) >> 1) | ((i & 8) >> 3)
INBOX = 160*4096
MAIL_OFF = 0x100000
EPOCH_OFF = MAIL_OFF + 256*2048
STAMP_OFF = EPOCH_OFF + 4096
NSTAMP = 8
TRACE_OFF = STAMP_OFF + 256*2*64

def gen(D=5, DA=None, DK=None, DP=None, DE=8, ke=1, HB=17, CO=9, hx=2, wqD=4, wD=3, XL=32, spare=2, alg=12,
        kvflags="nt", wflags="nt", outf="sc1", stamps=False, trace=False, qsleep=2, osleep=2, qpre=0, mflag='sc1', prime=0, name=NAME):
    if isinstance(D, int): D = (D,)
    if isinstance(DP, int): DP = (DP,)
    e = Em()
    s, v, ds = e.s, e.v, e.ds
    LDS_Q = [0, 2048]
    LDS_OS = 0
    LDS_OF = 2048
    LDS_ML = [4096, 4160]
    LDS_F = 4224
    LDS_R = 4352
    LDS_OR = LDS_R + 4*2560
    LDS_X = 16384
    LDS_BYTES = LDS_X + 4*XL*1024
    R = 48
    hdr = ["; decode attention (two blocks) fused with the q / output projections; generated by my gen7.py",
           "; kernarg: A_x A_k A_v A_wq A_wo B_x B_k B_v B_wq B_wo out debug ws",
           "; @launch grid=(256,1,1) block=(512,1,1) lds=%d" % LDS_BYTES,
           '.amdgcn_target "amdgcn-amd-amdhsa--gfx950"',
           ".text\n.globl %s\n.p2align 8\n.type %s,@function\n%s:" % (name, name, name)]
    KV_, W_, X_, WS_, OUT_ = "s[24:27]", "s[32:35]", "s[40:43]", "s[44:47]", "s[52:55]"
    sW, sH, sB, sP, sK, sT, sId, sCnt = "s56", "s57", "s58", "s59", "s60", "s61", "s62", "s63"
    mB1, mB0 = "s[64:65]", "s[66:67]"
    sM, sL, sIn, sPub, sIt, sTag = "s68", "s69", "s71", "s72", "s73", "s76"
    vLane16, vG, vCc = "v1", "v2", "v3"
    MASK = [4, 5, 6, 7]
    AOP = [8, 12]
    vLdsW = 16
    T = 17
    def rng(a, n): return "v[%d:%d]" % (a, a+n-1)
    def stamp(k):
        if stamps: s("s_memrealtime s[%d:%d]" % (80+2*k, 81+2*k))
    def tr():
        if trace:
            s("s_memrealtime s[96:97]")
            s("s_waitcnt lgkmcnt(0)")
            s("s_mov_b32 m0, s79")
            e.ins("v_writelane_b32 v26, s96, m0", w=["v26"], r=["s96"], kind='valu')
            s("s_add_u32 s79, s79, 1")
    def buildA(buf, src, lane):
        for w in range(4):
            v("v_and_b32_dpp v%d, v%d, v%d row_newbcast:%d row_mask:0xf bank_mask:0xf" % (AOP[buf]+w, src, MASK[w], lane))
    def make_masks():
        v("v_and_b32 v%d, 1, %s" % (T, vCc))
        v("v_lshlrev_b32 v%d, 4, v%d" % (T, T))
        v("v_mov_b32 v%d, 0xffff" % (T+1))
        v("v_lshlrev_b32 v%d, v%d, v%d" % (T, T, T+1))
        v("v_lshrrev_b32 v%d, 1, %s" % (T+1, vCc))
        for w in range(4):
            v("v_cmp_eq_u32 vcc, %d, v%d" % (w, T+1))
            v("v_cndmask_b32_e32 v%d, 0, v%d, vcc" % (MASK[w], T))
        v("v_lshlrev_b32 v%d, 5, %s" % (T, vCc))
        v("v_lshl_add_u32 v%d, %s, 4, v%d" % (T, vG, T))
        s("s_and_b32 s3, %s, 3" % sW)
        s("s_lshl_b32 s3, s3, 9")
        v("v_add_u32 v%d, s3, v%d" % (vLdsW, T))
    nlab = [0]
    def lds_wait(off, n, zero, tmp, sleep=0):
        nlab[0] += 1
        a, b = "L_w%d" % nlab[0], "L_w%d_ok" % nlab[0]
        s("s_mov_b32 s70, 0")
        e.label(a)
        ds("ds_read_b32 v%d, v%d offset:%d" % (tmp, zero, off))
        s("s_add_u32 s70, s70, 1")
        s("s_waitcnt lgkmcnt(0)")
        v("v_readfirstlane_b32 s3, v%d" % tmp)
        s("s_cmp_ge_u32 s70, 0x100000")
        s("s_cbranch_scc1 %s" % b)
        s("s_cmp_ge_u32 s3, %d" % n)
        if sleep:
            s("s_cbranch_scc1 %s" % b)
            s("s_sleep %d" % sleep)
            s("s_branch %s" % a)
        else:
            s("s_cbranch_scc0 %s" % a)
        e.label(b)
    def lds_signal(off, zero, one):
        s("s_mov_b64 exec, 1")
        ds("ds_add_u32 v%d, v%d offset:%d" % (zero, one, off))
        s("s_mov_b64 exec, -1")
    def ml_wait(br, n, dst, zero, tmp, sleep=0):
        nlab[0] += 1
        a, b = "L_m%d" % nlab[0], "L_m%d_ok" % nlab[0]
        s("s_mov_b32 s70, 0")
        e.label(a)
        ds("ds_read_b128 %s, v%d offset:%d" % (rng(dst, 4), zero, LDS_ML[br]))
        ds("ds_read_b128 %s, v%d offset:%d" % (rng(dst+4, 4), zero, LDS_ML[br] + 16))
        if n == 5: ds("ds_read_b64 %s, v%d offset:%d" % (rng(dst+8, 2), zero, LDS_ML[br] + 32))
        s("s_add_u32 s70, s70, 1")
        s("s_waitcnt lgkmcnt(0)")
        v("v_min3_u32 v%d, v%d, v%d, v%d" % (tmp, dst+1, dst+3, dst+5))
        v("v_min3_u32 v%d, v%d, v%d, v%d" % (tmp, tmp, dst+7, dst+9 if n == 5 else dst+7))
        s("s_cmp_ge_u32 s70, 0x100000")
        v("v_readfirstlane_b32 s3, v%d" % tmp)
        s("s_cbranch_scc1 %s" % b)
        s("s_cmp_lg_u32 s3, 0")
        if sleep:
            s("s_cbranch_scc1 %s" % b)
            s("s_sleep %d" % sleep)
            s("s_branch %s" % a)
        else:
            s("s_cbranch_scc0 %s" % a)
        e.label(b)
    def ml_combine(n, src, M, L):
        v("v_max3_f32 v%d, v%d, v%d, v%d" % (M, src, src+2, src+4))
        v("v_max3_f32 v%d, v%d, v%d, v%d" % (M, M, src+6, src+8 if n == 5 else src+6))
        for u in range(n): v("v_sub_f32 v%d, v%d, v%d" % (src+2*u, src+2*u, M))
        for u in range(n): v("v_exp_f32 v%d, v%d" % (src+2*u, src+2*u))
        v("v_mul_f32 v%d, v%d, v%d" % (L, src, src+1))
        for u in range(1, n): v("v_fmac_f32 v%d, v%d, v%d" % (L, src+2*u, src+2*u+1))
    def wave_reduce(op, r, dst):
        for sh in (8, 4, 2, 1):
            v("%s_dpp v%d, v%d, v%d row_ror:%d row_mask:0xf bank_mask:0xf" % (op, r, r, r, sh))
        v("%s_dpp v%d, v%d, v%d row_bcast:15 row_mask:0xa bank_mask:0xf" % (op, r, r, r))
        v("%s_dpp v%d, v%d, v%d row_bcast:31 row_mask:0xc bank_mask:0xf" % (op, r, r, r))
        v("v_readlane_b32 %s, v%d, 63" % (dst, r))
    s("s_cmp_ge_u32 s2, 256")
    s("s_cbranch_scc1 L_done")
    stamp(0)
    s("s_load_dwordx16 s[4:19], s[0:1], 0")
    s("s_load_dwordx4 s[20:23], s[0:1], 64")
    s("s_load_dwordx2 s[48:49], s[0:1], 80")
    s("s_load_dwordx2 s[50:51], s[0:1], 96")
    v("v_lshrrev_b32 v%d, 6, v0" % T)
    v("v_and_b32 v%d, 63, v0" % (T+1))
    v("v_readfirstlane_b32 %s, v%d" % (sW, T))
    v("v_lshlrev_b32 %s, 4, v%d" % (vLane16, T+1))
    v("v_lshrrev_b32 %s, 4, v%d" % (vG, T+1))
    v("v_and_b32 %s, 15, v0" % vCc)
    s("s_xor_b32 s3, s2, %d" % hx)
    s("s_and_b32 %s, s3, 7" % sH)
    s("s_bfe_u32 %s, s2, 0x10003" % sP)
    s("s_lshr_b32 s3, s2, 4")
    s("s_lshl_b32 s3, s3, 3")
    s("s_or_b32 %s, s3, %s" % (sId, sH))
    s("s_and_b32 %s, %s, 31" % (sH, sId))
    s("s_lshr_b32 %s, %s, 5" % (sB, sId))
    s("s_mov_b32 s46, 0x%x" % (TRACE_OFF + 256*2*256))
    s("s_mov_b32 s47, 0x20000")
    s("s_lshl_b32 s78, %s, 7" % sB)
    s("s_add_u32 s78, s78, %d" % EPOCH_OFF)
    if trace:
        v("v_mov_b32 v26, 0")
        s("s_mov_b32 s79, 0")
    s("s_cmp_ge_u32 %s, 4" % sW)
    s("s_cbranch_scc1 L_helper")
    Q, S, ML, Pp, Pa, Pb, Pc, Pt, ACC, vC, vXL, vZ, vOne = 28, 32, 40, 48, 52, 54, 56, 58, 60, 27, 25, 24, 23
    RING = 64
    NC = 64 + XL
    s("s_lshl_b32 s70, %s, 20" % sId)
    s("s_mov_b32 s26, 0x100000")
    s("s_mov_b32 s27, 0x20000")
    tb = [b for b in range(14, 20) if b != HB]
    co = sum(((CO >> i) & 1) << tb[i] for i in range(5))
    s("s_lshl_b32 %s, %s, 12" % (sK, sW))
    s("s_and_b32 s3, %s, 1" % sW)
    s("s_mul_i32 s3, s3, %d" % co)
    s("s_add_u32 %s, %s, s3" % (sK, sK))
    s("s_lshl_b32 s3, %s, %d" % (sP, HB))
    v("v_add_u32 v22, s3, %s" % vLane16)
    vKV = "v22"
    s("s_mov_b32 %s, %d" % (sCnt, NC//4))
    s("s_waitcnt lgkmcnt(0)")
    s("s_add_u32 s24, s6, s70"); s("s_addc_u32 s25, s7, 0")
    def slot_of(n):
        if n < R: return n
        if n < R + XL: return 24 + (n - R) % 16
        if n < NC + 8: return n - R - XL
        return 16 + (n - NC) % 16
    def slot(n): return rng(RING + 4*slot_of(n), 4)
    issued = [0]
    deep = [False]
    phase = [0]
    if isinstance(DA, int): DA = (DA,)
    if isinstance(DK, int): DK = (DK,)
    def issue_kv():
        m = issued[0]; issued[0] += 1
        d = D[m % len(D)]
        if DA and phase[0] == 0: d = DA[m % len(DA)]
        if DK and phase[0] == 1: d = DK[m % len(DK)]
        if DP and m < R + XL: d = DP[min(m//8, len(DP)-1)]
        if DE and deep[0]: d = DE
        if m - d >= 0: e.wait_vm("kv%d" % (m - d))
        imm = (m % 4)*1024
        if R <= m < R + XL:
            if m % 4 == 0 or trace:
                s("s_add_u32 m0, s38, %d" % (((m - R) & ~3)*1024))
                s("s_nop 0")
            e.vm_op("buffer_load_dwordx4 %s, %s, %s offen offset:%d %s lds" % (vKV, KV_, sK, imm, kvflags), r=[vKV, KV_, sK], tag="kv%d" % m)
        else:
            e.load("buffer_load_dwordx4", slot(m), vKV, KV_, sK, imm, kvflags, tag="kv%d" % m)
        if m % 4 == 3:
            if HB != tb[0] - 1: s("s_or_b32 %s, %s, 0x%x" % (sK, sK, 1 << HB))
            s("s_add_u32 %s, %s, 0x%x" % (sK, sK, 1 << tb[0]))
            s("s_and_b32 %s, %s, 0x%x" % (sK, sK, 0xfffff & ~(1 << HB)))
            if m >= NC:
                s("s_add_u32 %s, %s, 1" % (sCnt, sCnt))
                s("s_cmp_lg_u32 %s, s40" % sCnt)
                s("s_cselect_b64 s[24:25], s[24:25], s[28:29]")
                s("s_cselect_b64 s[28:29], s[28:29], s[30:31]")
                s("s_cselect_b64 s[30:31], s[30:31], s[36:37]")
                s("s_cselect_b64 s[36:37], s[36:37], s[42:43]")
                s("s_cselect_b32 s3, 0, s41")
                s("s_cselect_b32 s41, s41, 32")
                s("s_add_u32 s40, s40, s3")
    for m in range(DP[0] if DP else min(DA or D)): issue_kv()
    stamp(1)
    s("s_add_u32 s28, s8, s70"); s("s_addc_u32 s29, s9, 0")
    s("s_add_u32 s30, s16, s70"); s("s_addc_u32 s31, s17, 0")
    s("s_add_u32 s36, s18, s70"); s("s_addc_u32 s37, s19, 0")
    s("s_mov_b64 s[42:43], s[28:29]")
    s("s_mov_b32 s40, 32")
    s("s_lshl_b32 s41, %s, 2" % sP)
    s("s_add_u32 s41, s41, 28")
    s("s_mul_i32 s38, %s, %d" % (sW, XL*1024))
    s("s_add_u32 s38, s38, %d" % LDS_X)
    v("v_add_u32 v%d, s38, %s" % (vXL, vLane16))
    s("s_barrier")
    s("s_mov_b32 s44, s50"); s("s_mov_b32 s45, s51")
    s("s_load_dword %s, s[50:51], s78" % sTag)
    s("s_mov_b32 s64, 0xcccccccc"); s("s_mov_b32 s65, 0xcccccccc")
    s("s_mov_b32 s66, 0xaaaaaaaa"); s("s_mov_b32 s67, 0xaaaaaaaa")
    make_masks()
    v("v_mov_b32 v%d, 0x%08x" % (vC, f2u(math.log2(math.e)/math.sqrt(128.0))))
    v("v_mov_b32 v%d, 0" % vZ)
    v("v_mov_b32 v%d, 1" % vOne)
    while issued[0] < R + XL - spare:
        if issued[0] % 8 == 0: tr()
        issue_kv()
    tr()
    def read_q(br, nissue):
        lds_wait(LDS_F + 4*br, 4, vZ, T+2)
        v("v_lshlrev_b32 v%d, 5, %s" % (T, vCc))
        QT = S
        for u in range(4):
            ds("ds_read_b128 %s, v%d offset:%d" % (rng(QT+8*u, 4), T, LDS_Q[br] + u*512))
            ds("ds_read_b128 %s, v%d offset:%d" % (rng(QT+8*u+4, 4), T, LDS_Q[br] + u*512 + 16))
        if nissue: issue_kv()
        for u in range(1, 4):
            s("s_waitcnt lgkmcnt(%d)" % (6 - 2*u))
            for k in range(0, 8, 2):
                v("v_pk_add_f32 %s, %s, %s" % (rng(QT+k, 2), rng(QT+k, 2), rng(QT+8*u+k, 2)))
        for k in range(nissue - 1): issue_kv()
        for k in range(4):
            v("v_cvt_pk_bf16_f32 v%d, v%d, v%d" % (Q+k, QT+2*k, QT+2*k+1))
    read_q(0, spare)
    stamp(2)
    pend = []
    def lvlA(n):
        d = Pa + (((n % 16) >> 1) & 1)
        v("v_add_f32_dpp v%d, v%d, v%d row_ror:8 row_mask:0xf bank_mask:0x3" % (d, Pp+(n-1) % 4, Pp+(n-1) % 4))
        v("v_add_f32_dpp v%d, v%d, v%d row_ror:8 row_mask:0xf bank_mask:0xc" % (d, Pp+n % 4, Pp+n % 4))
        if n % 4 == 3: pend.append(("B", n))
    def lvlB(n):
        d = Pb + (((n % 16) >> 2) & 1)
        v("v_add_f32_dpp v%d, v%d, v%d row_half_mirror row_mask:0xf bank_mask:0x5" % (d, Pa, Pa))
        v("v_add_f32_dpp v%d, v%d, v%d row_half_mirror row_mask:0xf bank_mask:0xa" % (d, Pa+1, Pa+1))
        if n % 8 == 7: pend.append(("C", n))
    def lvlC(n):
        d = Pc + (((n % 16) >> 3) & 1)
        v("v_add_f32_dpp v%d, v%d, v%d quad_perm:[2,3,0,1] row_mask:0xf bank_mask:0xf" % (Pt, Pb, Pb))
        v("v_add_f32_dpp v%d, v%d, v%d quad_perm:[2,3,0,1] row_mask:0xf bank_mask:0xf" % (Pt+1, Pb+1, Pb+1))
        v("v_cndmask_b32_e64 v%d, v%d, v%d, %s" % (d, Pt, Pt+1, mB1))
        if n % 16 == 15: pend.append(("D", n))
    def lvlD(n):
        v("v_add_f32_dpp v%d, v%d, v%d quad_perm:[1,0,3,2] row_mask:0xf bank_mask:0xf" % (Pt, Pc, Pc))
        v("v_add_f32_dpp v%d, v%d, v%d quad_perm:[1,0,3,2] row_mask:0xf bank_mask:0xf" % (Pt+1, Pc+1, Pc+1))
        for k in range(7): v("v_mov_b32 v%d, v%d" % (S+k, S+k+1))
        v("v_cndmask_b32_e64 v%d, v%d, v%d, %s" % (S+7, Pt, Pt+1, mB0))
    def run_pend():
        k, n = pend.pop(0)
        {"A": lvlA, "B": lvlB, "C": lvlC, "D": lvlD}[k](n)
    def kstep(n, do_issue):
        if do_issue: issue_kv()
        if R <= n + 4 < R + XL:
            e.wait_vm("kv%d" % (n + 4))
            ds("ds_read_b128 %s, v%d offset:%d" % (slot(n + 4), vXL, (n + 4 - R)*1024))
        if R <= n < R + XL: s("s_waitcnt lgkmcnt(%d)" % min(4, R + XL - 1 - n))
        e.wait_vm("kv%d" % n)
        base = RING + 4*slot_of(n)
        p = Pp + n % 4
        v("v_dot2_f32_bf16 v%d, v%d, v%d, 0" % (p, base, Q))
        for k in range(1, 4):
            v("v_dot2_f32_bf16 v%d, v%d, v%d, v%d" % (p, base+k, Q+k, p))
        if pend: run_pend()
        if n % 2 == 1: pend.append(("A", n))
    def loop(label, count, body):
        s("s_mov_b32 %s, %d" % (sIt, count))
        e.fence()
        e.label(label)
        e.vm_done -= 8
        tr()
        body()
        s("s_sub_u32 %s, %s, 1" % (sIt, sIt))
        s("s_cmp_lg_u32 %s, 0" % sIt)
        e.fence()
        s("s_cbranch_scc1 %s" % label)
    pos = [0]
    def kbody():
        for n in range(pos[0], pos[0]+16): kstep(n, True)
        pos[0] += 16
    vM = T+3
    def softmax(br):
        issue_kv()
        while pend: run_pend()
        v("v_max3_f32 v%d, v%d, v%d, v%d" % (T, S, S+1, S+2))
        v("v_max3_f32 v%d, v%d, v%d, v%d" % (T, T, S+3, S+4))
        v("v_max3_f32 v%d, v%d, v%d, v%d" % (T, T, S+5, S+6))
        v("v_max_f32 v%d, v%d, v%d" % (T, T, S+7))
        wave_reduce("v_max_f32", T, sM)
        issue_kv()
        v("v_mul_f32 v%d, %s, v%d" % (vM, sM, vC))
        for k in range(8): v("v_fma_f32 v%d, v%d, v%d, -v%d" % (S+k, S+k, vC, vM))
        for k in range(8): v("v_exp_f32 v%d, v%d" % (S+k, S+k))
        issue_kv()
        v("v_add_f32 v%d, v%d, v%d" % (T, S, S+1))
        for k in range(2, 8): v("v_add_f32 v%d, v%d, v%d" % (T, T, S+k))
        for k in range(8): v("v_cvt_pk_bf16_f32 v%d, v%d, v%d" % (S+k, S+k, S+k))
        wave_reduce("v_add_f32", T, sL)
        issue_kv()
        v("v_mov_b32 v%d, %s" % (vM+1, sL))
        s("s_lshl_b32 s3, %s, 3" % sW)
        v("v_mov_b32 v%d, s3" % T)
        s("s_mov_b64 exec, 1")
        ds("ds_write_b64 v%d, %s offset:%d" % (T, rng(vM, 2), LDS_ML[br]))
        s("s_mov_b64 exec, -1")
        for k in range(4): v("v_mov_b32 v%d, 0" % (ACC+k))
        buildA(0, S, bitrev4(0))
    def vbody(last=False, steps=range(16)):
        for i in range(16):
            n = pos[0] + i
            if i in steps: issue_kv()
            e.wait_vm("kv%d" % n)
            v("v_mfma_f32_16x16x32_bf16 %s, %s, %s, %s" % (rng(ACC, 4), rng(AOP[i & 1], 4), slot(n), rng(ACC, 4)))
            if i < 15: buildA((i+1) & 1, S, bitrev4(i+1))
            elif not last:
                buildA(0, S+1, bitrev4(0))
                for k in range(7): v("v_mov_b32 v%d, v%d" % (S+k, S+k+1))
        pos[0] += 16
    def scale(br, nissue=2):
        if nissue > 0: issue_kv()
        ml_wait(br, 4, ML, vZ, T+1)
        if nissue > 1: issue_kv()
        v("v_max3_f32 v%d, v%d, v%d, v%d" % (T, ML, ML+2, ML+4))
        v("v_max_f32 v%d, v%d, v%d" % (T, T, ML+6))
        v("v_sub_f32 v%d, v%d, v%d" % (vM, vM, T))
        v("v_exp_f32 v%d, v%d" % (vM, vM))
    def write_o(off):
        for k in range(4): v("v_mul_f32 v%d, v%d, v%d" % (ACC+k, ACC+k, vM))
        s("s_mov_b32 exec_hi, 0")
        ds("ds_write_b128 v%d, %s offset:%d" % (vLdsW, rng(ACC, 4), off))
        s("s_mov_b64 exec, -1")
    for n in range(NC):
        if n % 16 == 0: tr()
        kstep(n, (n*24)//NC != ((n-1)*24)//NC if n > 1 else n == 1)
    assert issued[0] == NC + 8
    pos[0] = NC
    st0 = [(k, n % 16) for k, n in pend]
    loop("L_kA", (128 - NC)//16, kbody)
    assert st0 == [(k, n % 16) for k, n in pend]
    softmax(0)
    loop("L_vA", 6, vbody)
    def send_o():
        issue_kv()
        write_o(LDS_OS)
        issue_kv()
        s("s_waitcnt lgkmcnt(0)")
        lds_signal(LDS_F + 8, vZ, vOne)
    def blockB_keys(tag):
        read_q(1, 2)
        assert issued[0] == pos[0] + 8
        pend[:] = [(k, pos[0] - 16 + i) for k, i in st0]
        phase[0] = 1
        loop("L_kB" + tag, 8, kbody)
        phase[0] = 2
        softmax(1)
    state = (list(e.vm), e.vm_done, issued[0], pos[0])
    s("s_cmp_eq_u32 %s, 0" % sP)
    s("s_cbranch_scc1 L_half0")
    vbody()
    scale(0)
    tr()
    vbody(True, (0, 2, 4, 7, 10, 13))
    send_o()
    stamp(3)
    blockB_keys("1")
    loop("L_vB1", 7 - ke, vbody)
    deep[0] = True
    if ke: loop("L_vB1d", ke, vbody)
    lds_signal(LDS_F + 12, vZ, vOne)
    scale(1)
    tr()
    vbody(True, (0, 1))
    e.fence()
    s("s_branch L_last")
    e.fence()
    e.label("L_half0")
    e.vm, e.vm_done, issued[0], pos[0] = list(state[0]), state[1], state[2], state[3]
    deep[0] = False; phase[0] = 0
    SV = RING
    vbody(True, (0, 1, 3, 4, 6, 7, 9, 11, 13, 15))
    v("v_mov_b32 v%d, v%d" % (SV+4, S+1))
    v("v_mov_b32 v%d, v%d" % (SV+5, vM))
    for k in range(4): v("v_mov_b32 v%d, v%d" % (SV+k, ACC+k))
    stamp(3)
    blockB_keys("0")
    loop("L_vB0", 7, vbody)
    deep[0] = bool(ke)
    scale(1)
    tr()
    vbody(True, range(14))
    deep[0] = True
    send_o()
    v("v_mov_b32 v%d, v%d" % (S, SV+4))
    v("v_mov_b32 v%d, v%d" % (vM, SV+5))
    for k in range(4): v("v_mov_b32 v%d, v%d" % (ACC+k, SV+k))
    scale(0)
    assert issued[0] == pos[0] + 16
    buildA(0, S, bitrev4(0))
    vbody(True, ())
    e.fence()
    e.label("L_last")
    tr()
    stamp(4)
    write_o(LDS_OF)
    s("s_waitcnt lgkmcnt(0)")
    s("s_barrier")
    s("s_cmp_lg_u32 %s, 0" % sW)
    s("s_cbranch_scc1 L_done")
    if not stamps:
        s("s_cmp_ge_u32 %s, 20" % sH)
        s("s_cbranch_scc1 L_done")
    s("s_lshl_b32 %s, %s, 2" % (sIn, sP))
    s("s_add_u32 %s, %s, %s" % (sIn, sIn, sB))
    s("s_mul_i32 %s, %s, 20" % (sIn, sIn))
    s("s_add_u32 %s, %s, %s" % (sIn, sIn, sH))
    s("s_lshl_b32 %s, %s, 12" % (sIn, sIn))
    s("s_mov_b32 s52, s48"); s("s_mov_b32 s53, s49"); s("s_mov_b32 s54, %d" % (4*2560)); s("s_mov_b32 s55, 0x20000")
    s("s_mul_i32 s38, %s, 2560" % sB)
    s("s_mul_i32 s3, %s, 1280" % sP)
    s("s_add_u32 s38, s38, s3")
    s("s_lshl_b32 s3, %s, 6" % sH)
    s("s_add_u32 s38, s38, s3")
    v("v_lshrrev_b32 v%d, 1, %s" % (T+2, vLane16))
    s("s_mov_b32 %s, 0" % sIt)
    s("s_add_u32 %s, %s, 1" % (sTag, sTag))
    s("s_and_b32 s77, %s, 0xff" % sTag)
    s("s_barrier")
    if stamps:
        s("s_cmp_ge_u32 %s, 20" % sH)
        s("s_cbranch_scc1 L_stamps")
    G0 = RING
    e.label("L_poll")
    for k in range(4):
        e.ins("buffer_load_dwordx4 %s, %s, %s, %s offen offset:%d sc1" % (rng(G0+4*k, 4), vLane16, WS_, sIn, k*1024), w=[rng(G0+4*k, 4)], r=[vLane16, sIn], kind='vmem')
    for k in range(4):
        s("s_waitcnt vmcnt(%d)" % (3-k))
        for j in range(4): v("v_xor_b32 v%d, s77, v%d" % (G0+4*k+j, G0+4*k+j))
        if k == 0: v("v_or_b32 v%d, v%d, v%d" % (T, G0, G0+1))
        else: v("v_or3_b32 v%d, v%d, v%d, v%d" % (T, T, G0+4*k, G0+4*k+1))
        v("v_or3_b32 v%d, v%d, v%d, v%d" % (T, T, G0+4*k+2, G0+4*k+3))
        if k:
            v("v_pk_add_f32 %s, %s, %s" % (rng(G0+32, 2), rng(G0+32 if k > 1 else G0, 2), rng(G0+4*k, 2)))
            v("v_pk_add_f32 %s, %s, %s" % (rng(G0+34, 2), rng(G0+34 if k > 1 else G0+2, 2), rng(G0+4*k+2, 2)))
    v("v_and_b32 v%d, 0xff, v%d" % (T, T))
    v("v_cmp_ne_u32 vcc, 0, v%d" % T)
    s("s_add_u32 %s, %s, 1" % (sIt, sIt))
    s("s_cmp_ge_u32 %s, 0x40000" % sIt)
    s("s_cbranch_scc1 L_poll_ok")
    e.ins("s_cbranch_vccnz L_poll", r=["vcc"], kind='salu')
    e.label("L_poll_ok")
    stamp(5)
    F = G0 + 32
    for k in range(4):
        v("v_add_f32_dpp v%d, v%d, v%d row_ror:8 row_mask:0xf bank_mask:0xf" % (F+k, F+k, F+k))
    for sw in ("v_permlane16_swap_b32", "v_permlane32_swap_b32"):
        for k in range(4): v("v_mov_b32 v%d, v%d" % (F+4+k, F+k))
        for k in range(4): v("%s v%d, v%d" % (sw, F+k, F+4+k))
        for k in range(4): v("v_add_f32 v%d, v%d, v%d" % (F+k, F+k, F+4+k))
    v("v_cvt_pk_bf16_f32 v%d, v%d, v%d" % (F, F, F+1))
    v("v_cvt_pk_bf16_f32 v%d, v%d, v%d" % (F+1, F+2, F+3))
    v("v_mov_b32 v%d, %s" % (T+3, sTag))
    s("s_mov_b64 exec, 0xff")
    e.ins("buffer_store_dwordx2 %s, v%d, %s, s38 offen %s" % (rng(F, 2), T+2, OUT_, outf), r=[rng(F, 2), "v%d" % (T+2), "s38"], kind='vmem')
    s("s_lshl_b32 s3, %s, 1" % sH)
    s("s_add_u32 s3, s3, %s" % sP)
    s("s_cmp_lg_u32 s3, 1")
    s("s_cbranch_scc1 %s" % ("L_stamps" if stamps else "L_done"))
    s("s_mov_b64 exec, 1")
    e.ins("buffer_store_dword v%d, v%d, %s, s78 offen sc1" % (T+3, vZ, WS_), r=["v%d" % (T+3), "v%d" % vZ, "s78"], kind='vmem')
    if stamps: s("s_branch L_stamps")
    s("s_endpgm")
    e.fence()
    e.label("L_helper")
    e.vm = []; e.vm_done = -1
    XP, ACO, WR, RES = 28, 36, 64, 240
    vWQ, vWO, vX, hZ, hOne = 56, 57, 58, 59, 60
    vO, vR, vRd, vPub, vTm, vTg = 18, 19, 20, 21, 22, 23
    def wreg(j): return rng(WR + 4*j, 4)
    sU = "s39"
    s("s_sub_u32 %s, %s, 4" % (sU, sW))
    s("s_mov_b32 s34, 0x%x" % (640*8192)); s("s_mov_b32 s35, 0x20000")
    s("s_mov_b32 s42, 0x%x" % (4*1280)); s("s_mov_b32 s43, 0x20000")
    v("v_lshlrev_b32 v%d, 4, %s" % (T, vCc))
    v("v_lshl_add_u32 v%d, %s, 13, v%d" % (vWQ, vG, T))
    v("v_mul_u32_u24 v%d, 1280, %s" % (vWO, vG))
    v("v_add_u32 v%d, v%d, v%d" % (vWO, vWO, T))
    v("v_lshl_add_u32 v%d, %s, 2, %s" % (vX, vCc, vG))
    v("v_lshlrev_b32 v%d, 1, v%d" % (vX, vX))
    s("s_mul_i32 s3, %s, %d" % (sU, 160*8192))
    s("s_lshl_b32 s36, %s, 8" % sH)
    s("s_add_u32 s36, s36, s3")
    s("s_mov_b32 %s, s36" % sT)
    s("s_mul_i32 s38, %s, 1280" % sB)
    s("s_mul_i32 s3, %s, 320" % sU)
    s("s_add_u32 s38, s38, s3")
    v("v_mov_b32 v%d, 0" % hZ)
    v("v_mov_b32 v%d, 1" % hOne)
    v("v_lshrrev_b32 v%d, 2, %s" % (T+1, vLane16))
    s("s_waitcnt lgkmcnt(0)")
    s("s_cmp_eq_u32 %s, 0" % sP)
    s("s_cselect_b64 s[32:33], s[10:11], s[20:21]")
    s("s_cselect_b64 s[40:41], s[4:5], s[14:15]")
    s("s_cselect_b64 s[30:31], s[12:13], s[22:23]")
    for k in range(3):
        e.load("buffer_load_ushort", "v%d" % (XP+k), "v%d" % vX, X_, "s38", 128*k, "", tag="x%d" % k)
    wi = [0]
    def issue_w():
        m = wi[0]
        if m >= 80: return
        wi[0] += 1
        kind, j = m//40, m % 40
        d = wqD if kind == 0 else wD
        if m - d >= 0: e.wait_vm("w%d" % (m - d))
        if m == 40:
            s("s_mov_b64 s[32:33], s[30:31]"); s("s_mov_b32 %s, s37" % sT)
        if kind == 0:
            e.load("buffer_load_dwordx4", wreg(j), "v%d" % vWQ, W_, sT, 0, wflags, tag="w%d" % m)
            s("s_add_u32 %s, %s, 0x8000" % (sT, sT))
        else:
            e.load("buffer_load_dwordx4", wreg(j), "v%d" % vWO, W_, sT, (j % 5)*256, wflags, tag="w%d" % m)
            if j % 5 == 4: s("s_add_u32 %s, %s, %d" % (sT, sT, 4*1280))
    HT, MW = 244, 224
    for j in range(wqD): issue_w()
    ds("ds_write_b32 v%d, v%d offset:%d" % (T+1, hZ, LDS_ML[0]))
    s("s_lshl_b32 s27, %s, 11" % sP)
    s("s_xor_b32 s25, s27, 2048")
    s("s_lshl_b32 s3, %s, 9" % sU)
    s("s_add_u32 s3, s3, s25")
    v("v_lshl_add_u32 v%d, v%d, 1, s3" % (T+1, T+1))
    v("v_mov_b32 v%d, 0" % (hZ+3))
    v("v_mov_b32 v%d, 0" % (hZ+4))
    ds("ds_write_b64 v%d, %s" % (T+1, rng(hZ+3, 2)))
    s("s_waitcnt lgkmcnt(0)")
    s("s_barrier")
    s("s_load_dword %s, s[50:51], s78" % sTag)
    s("s_mov_b32 s44, s50"); s("s_mov_b32 s45, s51")
    s("s_lshl_b32 s37, %s, 7" % sH)
    s("s_lshl_b32 s3, %s, 5" % sU)
    s("s_add_u32 s37, s37, s3")
    s("s_mul_i32 s37, s37, 1280")
    make_masks()
    v("v_and_b32 v%d, 7, %s" % (vO, vCc))
    v("v_lshl_add_u32 v%d, v%d, 2, %s" % (vO, vO, vG))
    v("v_lshlrev_b32 v%d, 2, v%d" % (vO, vO))
    s("s_lshl_b32 s3, %s, 7" % sU)
    v("v_add_u32 v%d, s3, v%d" % (vO, vO))
    s("s_mul_i32 s3, %s, %d" % (sU, 2560-512))
    v("v_add_u32 v%d, s3, v%d" % (vR, vLdsW))
    v("v_subrev_u32 v%d, 256, v0" % T)
    v("v_lshlrev_b32 v%d, 4, v%d" % (vRd, T))
    v("v_lshrrev_b32 v%d, 3, v%d" % (vPub, T))
    v("v_lshlrev_b32 v%d, 12, v%d" % (vPub, vPub))
    v("v_and_b32 v%d, 7, v%d" % (vTm, T))
    v("v_lshl_add_u32 v%d, v%d, 4, v%d" % (vPub, vTm, vPub))
    v("v_cmp_gt_u32 vcc, 160, v%d" % T)
    s("s_mov_b64 s[74:75], vcc")
    s("s_lshl_b32 s3, %s, 2" % sP)
    s("s_add_u32 s3, s3, %s" % sB)
    s("s_mul_i32 %s, s3, %d" % (sPub, 20*4096))
    s("s_lshl_b32 s3, %s, 7" % sH)
    s("s_add_u32 %s, %s, s3" % (sPub, sPub))
    s("s_lshl_b32 s28, s2, 11")
    s("s_add_u32 s28, s28, %d" % MAIL_OFF)
    s("s_xor_b32 s29, s28, 0x4000")
    def qproj():
        e.wait_vm("x2")
        for k in range(3): v("v_lshl_or_b32 v%d, v%d, 16, v%d" % (XP+k, XP+k, XP+k))
        buildA(0, XP, 0)
        for j in range(40):
            if j+1 < 40: buildA((j+1) & 1, XP + (j+1)//16, (j+1) % 16)
            e.wait_vm("w%d" % j)
            if j % 8 == 0: tr()
            v("v_mfma_f32_16x16x32_bf16 %s, %s, %s, %s" % (rng(ACO, 4), rng(AOP[j & 1], 4), wreg(j), rng(ACO, 4) if j else "0"))
            issue_w()
        v("v_add_u32 v%d, s27, v%d" % (T, vLdsW))
        s("s_lshl_b32 s3, %s, 2" % sP)
        v("v_mov_b32 v%d, s3" % (hZ+2))
        s("s_mov_b32 exec_hi, 0")
        ds("ds_write_b128 v%d, %s" % (T, rng(ACO, 4)))
        s("s_mov_b64 exec, -1")
        s("s_waitcnt lgkmcnt(0)")
        lds_signal(LDS_F, hZ+2, hOne)
    def vec_send(kind, who=None):
        nlab[0] += 1
        skip = "L_vs%d" % nlab[0]
        s("s_cmp_lg_u32 %s, 0" % sU)
        s("s_cbranch_scc1 %s" % skip)
        if who is not None:
            s("s_cmp_lg_u32 %s, %d" % (sP, who))
            s("s_cbranch_scc1 %s" % skip)
        if kind == "q":
            v("v_add_u32 v%d, s27, %s" % (T, vLane16))
            lds_wait(LDS_F, 4, hZ+2, HT)
        else:
            ml_wait(1 - who, 4, HT, hZ, HT+8, sleep=4)
            ml_combine(4, HT, MW, MW+2)
            v("v_lshlrev_b32 v%d, 8, v%d" % (MW+1, MW))
            v("v_lshlrev_b32 v%d, 8, v%d" % (MW+3, MW+2))
            v("v_add_u32 v%d, %d, %s" % (T, LDS_OS, vLane16))
            for k in range(4): v("v_and_or_b32 v%d, v%d, v%d, v%d" % (RES+k, MW+k, vTm, vTg))
            lds_wait(LDS_F + 8, 4, hZ, HT, sleep=1)
        s("s_mov_b32 exec_hi, 0")
        ds("ds_read_b128 %s, v%d" % (rng(RES, 4), T))
        for u in range(1, 4): ds("ds_read_b128 %s, v%d offset:%d" % (rng(HT+4*(u-1), 4), T, 512*u))
        for u in range(1, 4):
            s("s_waitcnt lgkmcnt(%d)" % (3-u))
            v("v_pk_add_f32 %s, %s, %s" % (rng(RES, 2), rng(RES, 2), rng(HT+4*(u-1), 2)))
            v("v_pk_add_f32 %s, %s, %s" % (rng(RES+2, 2), rng(RES+2, 2), rng(HT+4*(u-1)+2, 2)))
        if kind == "q":
            v("v_cvt_pk_bf16_f32 v%d, v%d, v%d" % (HT, RES, RES+1))
            v("v_cvt_pk_bf16_f32 v%d, v%d, v%d" % (HT+1, RES+2, RES+3))
            v("v_lshlrev_b32 v%d, 16, v%d" % (RES, HT))
            v("v_and_b32 v%d, 0xffff0000, v%d" % (RES+1, HT))
            v("v_lshlrev_b32 v%d, 16, v%d" % (RES+2, HT+1))
            v("v_and_b32 v%d, 0xffff0000, v%d" % (RES+3, HT+1))
        for k in range(4): v("v_and_or_b32 v%d, v%d, v%d, v%d" % (RES+k, RES+k, vTm, vTg))
        if kind == "o": s("s_mov_b32 exec_hi, 1")
        e.ins("buffer_store_dwordx4 %s, %s, %s, s29 offen offset:%d %s" % (rng(RES, 4), vLane16, WS_, 0 if kind == "q" else 1024, mflag), r=[rng(RES, 4), vLane16, "s29"], kind='vmem')
        s("s_mov_b64 exec, -1")
        s("s_waitcnt vmcnt(0)")
        e.fence()
        e.label(skip)
    def vec_recv(kind, who=None):
        nlab[0] += 1
        skip, a, b = "L_vr%d" % nlab[0], "L_vr%d_a" % nlab[0], "L_vr%d_b" % nlab[0]
        s("s_cmp_lg_u32 %s, 0" % sU)
        s("s_cbranch_scc1 %s" % skip)
        if who is not None:
            s("s_cmp_lg_u32 %s, %d" % (sP, who))
            s("s_cbranch_scc1 %s" % skip)
        if kind == "q" and who == 1 and qpre: s("s_sleep %d" % qpre)
        if kind == "o":
            if who == 0: ml_wait(1, 4, HT, hZ, HT+8, sleep=16)
            ml_wait(who, 4, HT, hZ, HT+8, sleep=4)
            ml_combine(4, HT, MW, MW+1)
            if who == 1: lds_wait(LDS_F + 12, 1, hZ, HT, sleep=4)
        s("s_mov_b32 exec_hi, %d" % (kind == "o"))
        v("v_add_u32 v%d, %s, %s" % (T, "s25" if kind == "q" else str(LDS_OR), vLane16))
        s("s_mov_b32 s70, 0")
        e.label(a)
        e.ins("buffer_load_dwordx4 %s, %s, %s, s28 offen offset:%d sc1" % (rng(HT, 4), vLane16, WS_, 0 if kind == "q" else 1024), w=[rng(HT, 4)], r=[vLane16, "s28"], kind='vmem')
        s("s_add_u32 s70, s70, 1")
        s("s_waitcnt vmcnt(0)")
        for k in range(4): v("v_xor_b32 v%d, v%d, v%d" % (HT+k, HT+k, vTg))
        v("v_or3_b32 v%d, v%d, v%d, v%d" % (HT+4, HT, HT+1, HT+2))
        v("v_or_b32 v%d, v%d, v%d" % (HT+4, HT+4, HT+3))
        v("v_and_b32 v%d, 0xff, v%d" % (HT+4, HT+4))
        v("v_cmp_ne_u32 vcc, 0, v%d" % (HT+4))
        s("s_cmp_ge_u32 s70, 0x40000")
        s("s_cbranch_scc1 %s" % b)
        e.ins("s_cbranch_vccz %s" % b, r=["vcc"], kind='salu')
        s("s_sleep %d" % (qsleep if kind == "q" else osleep))
        s("s_branch %s" % a)
        e.label(b)
        if kind == "o":
            for k in range(4): v("v_readlane_b32 s%d, v%d, 32" % (24+k, HT+k))
            s("s_bfe_u32 s25, s25, 0x80008"); s("s_bfe_u32 s27, s27, 0x80008")
            s("s_or_b32 s24, s24, s25"); s("s_or_b32 s26, s26, s27")
            v("v_max_f32 v%d, s24, v%d" % (MW+2, MW))
            v("v_sub_f32 v%d, v%d, v%d" % (MW, MW, MW+2))
            v("v_sub_f32 v%d, s24, v%d" % (MW+2, MW+2))
            v("v_exp_f32 v%d, v%d" % (MW, MW))
            v("v_exp_f32 v%d, v%d" % (MW+2, MW+2))
            v("v_mul_f32 v%d, v%d, v%d" % (MW+1, MW, MW+1))
            v("v_fma_f32 v%d, s26, v%d, v%d" % (MW+1, MW+2, MW+1))
            v("v_rcp_f32 v%d, v%d" % (MW+1, MW+1))
            s("s_mov_b32 exec_hi, 0")
            v("v_mul_f32 v%d, v%d, v%d" % (MW+2, MW+2, MW+1))
            v("v_mul_f32 v%d, v%d, v%d" % (MW, MW, MW+1))
            for k in range(4): v("v_mul_f32 v%d, v%d, v%d" % (HT+k, HT+k, MW+2))
            ds("ds_write_b32 v%d, v%d offset:%d" % (hZ, MW, LDS_F + 16))
        ds("ds_write_b128 v%d, %s" % (T, rng(HT, 4)))
        s("s_mov_b64 exec, -1")
        if kind == "q":
            v("v_xor_b32 v%d, 4, v%d" % (hZ+2, hZ+2))
            v("v_mov_b32 v%d, 4" % T)
            s("s_waitcnt lgkmcnt(0)")
            lds_signal(LDS_F, hZ+2, T)
        e.fence()
        e.label(skip)
    def oproj():
        OP = XP
        for u in range(4):
            ds("ds_read_b32 v%d, v%d offset:%d" % (OP+u, vO, LDS_OF + u*512))
        ds("ds_read_b32 v%d, v%d offset:%d" % (OP+4, vO, LDS_OR))
        ds("ds_read_b32 v%d, v%d offset:%d" % (OP+5, hZ, LDS_F + 16))
        s("s_waitcnt lgkmcnt(4)")
        v("v_add_f32 v%d, v%d, v%d" % (OP, OP, OP+1))
        s("s_waitcnt lgkmcnt(2)")
        v("v_add_f32 v%d, v%d, v%d" % (OP+2, OP+2, OP+3))
        v("v_add_f32 v%d, v%d, v%d" % (OP, OP, OP+2))
        s("s_waitcnt lgkmcnt(0)")
        v("v_fma_f32 v%d, v%d, v%d, v%d" % (OP, OP, OP+5, OP+4))
        v("v_cvt_pk_bf16_f32 v%d, v%d, v%d" % (OP, OP, OP))
        buildA(0, OP, 0)
        for jj in range(8):
            if jj+1 < 8: buildA((jj+1) & 1, OP, jj+1)
            for ct in range(5):
                a = rng(ACO+4*ct, 4)
                v("v_mfma_f32_16x16x32_bf16 %s, %s, %s, %s" % (a, rng(AOP[jj & 1], 4), wreg(jj*5+ct), a if jj else "0"))
        s("s_mov_b32 exec_hi, 0")
        for ct in range(5):
            ds("ds_write_b128 v%d, %s offset:%d" % (vR, rng(ACO+4*ct, 4), LDS_R + ct*512))
    def reduce4(dst, tmp):
        ds("ds_read_b128 %s, v%d offset:%d" % (rng(dst, 4), vRd, LDS_R))
        for u in range(1, 4):
            ds("ds_read_b128 %s, v%d offset:%d" % (rng(tmp+4*(u-1), 4), vRd, LDS_R + u*2560))
        s("s_waitcnt lgkmcnt(2)")
        v("v_pk_add_f32 %s, %s, %s" % (rng(dst, 2), rng(dst, 2), rng(tmp, 2)))
        v("v_pk_add_f32 %s, %s, %s" % (rng(dst+2, 2), rng(dst+2, 2), rng(tmp+2, 2)))
        s("s_waitcnt lgkmcnt(0)")
        v("v_pk_add_f32 %s, %s, %s" % (rng(tmp+4, 2), rng(tmp+4, 2), rng(tmp+8, 2)))
        v("v_pk_add_f32 %s, %s, %s" % (rng(tmp+6, 2), rng(tmp+6, 2), rng(tmp+10, 2)))
        v("v_pk_add_f32 %s, %s, %s" % (rng(dst, 2), rng(dst, 2), rng(tmp+4, 2)))
        v("v_pk_add_f32 %s, %s, %s" % (rng(dst+2, 2), rng(dst+2, 2), rng(tmp+6, 2)))
        for k in range(4):
            v("v_and_or_b32 v%d, v%d, v%d, v%d" % (dst+k, dst+k, vTm, vTg))
    s("s_waitcnt lgkmcnt(0)")
    s("s_add_u32 %s, %s, 1" % (sTag, sTag))
    s("s_and_b32 %s, %s, 0xff" % (sTag, sTag))
    v("v_mov_b32 v%d, 0xffffff00" % vTm)
    v("v_mov_b32 v%d, %s" % (vTg, sTag))
    if prime & 1:
        v("v_lshlrev_b32 v%d, 3, %s" % (HT+8, vLane16))
        s("s_mov_b64 exec, 0x1f0f")
        e.load("buffer_load_dword", "v%d" % (HT+9), "v%d" % (HT+8), WS_, "s29", 0, "sc1", tag="prime")
        s("s_mov_b64 exec, -1")
    qproj()
    stamp(1)
    vec_send("q")
    vec_recv("q", 1)
    while wi[0] < 80:
        if wi[0] % 8 == 0: tr()
        issue_w()
    e.wait_vm("w79")
    stamp(2)
    vec_recv("q", 0)
    if prime & 2:
        s("s_mov_b64 exec, s[74:75]")
        e.load("buffer_load_dword", "v%d" % (HT+9), "v%d" % vPub, WS_, sPub, 0, "sc1", tag="prime2")
        s("s_mov_b64 exec, -1")
        s("s_waitcnt vmcnt(0)")
    vec_send("o", 1)
    vec_recv("o", 0)
    vec_send("o", 0)
    vec_recv("o", 1)
    s("s_waitcnt lgkmcnt(0)")
    if alg is not None:
        e.raw("    .p2align 6")
        for k in range(alg): s("s_nop 0")
    s("s_barrier")
    stamp(4)
    oproj()
    s("s_mov_b64 exec, s[74:75]")
    s("s_waitcnt lgkmcnt(0)")
    s("s_barrier")
    stamp(5)
    s("s_cbranch_execz L_done")
    reduce4(WR, WR+4)
    e.ins("buffer_store_dwordx4 %s, v%d, %s, %s offen sc1" % (rng(WR, 4), vPub, WS_, sPub), r=[rng(WR, 4), "v%d" % vPub, sPub], kind='vmem')
    if stamps:
        e.label("L_stamps")
        s("s_waitcnt vmcnt(0)")
        stamp(6)
        s("s_waitcnt lgkmcnt(0)")
        s("s_and_b32 s3, %s, 3" % sW)
        s("s_cmp_lg_u32 s3, 0")
        s("s_cbranch_scc1 L_done")
        s("s_lshl_b32 s38, %s, 7" % sP)
        s("s_add_u32 s38, s38, %s" % sId)
        s("s_lshl_b32 s38, s38, 1")
        s("s_lshr_b32 s3, %s, 2" % sW)
        s("s_add_u32 s38, s38, s3")
        s("s_lshl_b32 s38, s38, 6")
        s("s_add_u32 s38, s38, %d" % STAMP_OFF)
        s("s_getreg_b32 s94, hwreg(HW_REG_XCC_ID)")
        s("s_mov_b64 exec, 1")
        v("v_mov_b32 v%d, 0" % T)
        for k in range(8):
            v("v_mov_b32 v%d, s%d" % (64+k, 80+2*k))
        e.ins("buffer_store_dwordx4 %s, v%d, %s, s38 offen sc1" % (rng(64, 4), T, WS_), r=[rng(64, 4), "v%d" % T], kind='vmem')
        e.ins("buffer_store_dwordx4 %s, v%d, %s, s38 offen offset:16 sc1" % (rng(68, 4), T, WS_), r=[rng(68, 4), "v%d" % T], kind='vmem')
        if trace:
            s("s_mov_b64 exec, -1")
            s("s_sub_u32 s38, s38, %d" % STAMP_OFF)
            s("s_lshl_b32 s38, s38, 2")
            s("s_add_u32 s38, s38, %d" % TRACE_OFF)
            v("v_lshrrev_b32 v%d, 2, %s" % (T, vLane16))
            e.ins("buffer_store_dword v26, v%d, %s, s38 offen" % (T, WS_), r=["v26", "v%d" % T], kind='vmem')
    e.label("L_done")
    s("s_endpgm")
    tail = ['.section .rodata,"a"', ".p2align 6", ".amdhsa_kernel %s" % name,
            "  .amdhsa_next_free_vgpr 256", "  .amdhsa_next_free_sgpr 100", "  .amdhsa_accum_offset 256",
            "  .amdhsa_group_segment_fixed_size 0", "  .amdhsa_kernarg_size 104", "  .amdhsa_user_sgpr_count 2",
            "  .amdhsa_user_sgpr_kernarg_segment_ptr 1", "  .amdhsa_system_sgpr_workgroup_id_x 1", ".end_amdhsa_kernel"]
    return "\n".join(hdr) + "\n" + e.text() + "\n".join(tail) + "\n"

def report(stm):
    import numpy as np
    rows = []
    cons = [g for g in range(256) if (g & 31) < 20]
    for st in stm:
        w0 = st[:, 0, :]; w4 = st[:, 1, :]; t0 = min(w0[:, 0].min(), w4[:, 0].min())
        d = (w0[:, :7] - t0)/100; h = (w4[:, :7] - t0)/100
        rows.append([d[:, 0].max(), np.median(h[:, 1]), h[:, 1].max(), np.median(d[:, 2]), d[:, 2].max(), np.median(h[:, 2]), h[:, 2].max(),
                     np.median(d[:, 3]), d[:, 3].max(), h[:, 4].min(), h[:, 4].mean(), h[:, 4].max(), np.median(h[:, 5]-h[:, 4]), h[:, 5].max(), h[:, 6].max(), d[cons, 5].max(), d[cons, 6].max()])
    r = np.round(np.median(np.array(rows), axis=0), 2)
    print("   lastStart %.2f | qpart med %.2f max %.2f | q-ready med %.2f max %.2f | weights issued med %.2f max %.2f | A done med %.2f max %.2f | B done min %.2f mean %.2f max %.2f | outproj dur %.2f done max %.2f | published max %.2f | poll ok max %.2f | final %.2f" % tuple(r))
    print("   xcd mean done:", [round(float(np.mean([(((s_[(s_[:, 0, 7] & 7) == x, 1, 4]-s_[:, 0, 0].min())/100).mean()) for s_ in stm])), 1) for x in range(8)])
def report_trace(stm, trc):
    import numpy as np
    acc = []
    for st, t in zip(stm, trc):
        t0 = min(st[:, 0, 0].min(), st[:, 1, 0].min())
        x = (t.astype(np.int64) - t0)/100.0
        x[t == 0] = np.nan
        acc.append(x)
    a = np.array(acc)
    for w, nm, sl in ((0, "streamer p0", slice(0, 128)), (0, "streamer p1", slice(128, 256)), (1, "helper", slice(0, 256))):
        m = np.nanmedian(np.nanmean(a[:, sl, w, :], axis=1), axis=0)
        m = m[~np.isnan(m)]
        print("   %s times:" % nm, np.round(m, 2).tolist())
        print("   %s diffs:" % nm, np.round(np.diff(m), 2).tolist())
if __name__ == "__main__":
    cfg = json.loads(sys.argv[2]) if len(sys.argv) > 2 else {}
    open(sys.argv[1], "w").write(gen(**cfg))
```

```python
import sys, math, json, struct
from asmlib import Em
NAME = "concat_heads__mha_block_cached__gqa_block_cached__decode_kernel"
def f2u(x): return struct.unpack("<I", struct.pack("<f", x))[0]
def bitrev4(i): return ((i & 1) << 3) | ((i & 2) << 1) | ((i & 4) >> 1) | ((i & 8) >> 3)
INBOX = 160*4096
MAIL_OFF = 0x100000
EPOCH_OFF = MAIL_OFF + 256*2048
CTRL_OFF = EPOCH_OFF + 4096
HELLO_OFF = CTRL_OFF + 4096
STAMP_OFF = HELLO_OFF + 8192
NSTAMP = 8
TRACE_OFF = STAMP_OFF + 256*2*64

def gen(D=5, DA=None, DK=None, DP=None, DE=8, ke=1, HB=16, CO=5, hx=2, wqD=4, wD=3, XL=32, spare=2, alg=12,
        kvflags="nt", wflags="nt", outf=None, stamps=False, trace=False, qsleep=2, osleep=2, qpre=0, ctl=True, P=4, gp=0.07, fb=0.06, fe=0.0, cslp=16, cend=480, local=True, PB=(), PO=0, name=NAME):
    if isinstance(D, int): D = (D,)
    if outf is None: outf = '' if (ctl or local) else 'sc1'
    if isinstance(DP, int): DP = (DP,)
    e = Em()
    s, v, ds = e.s, e.v, e.ds
    LDS_Q = [0, 2048]
    LDS_OS = 0
    LDS_OF = 2048
    LDS_ML = [4096, 4160]
    LDS_F = 4224
    LDS_C = LDS_F + 32
    LDS_R = 4352
    LDS_OR = LDS_R + 4*2560
    LDS_X = 16384
    LDS_BYTES = LDS_X + 4*XL*1024
    R = 48
    hdr = ["; decode attention (two blocks) fused with the q / output projections; generated by my gen8.py",
           "; kernarg: A_x A_k A_v A_wq A_wo B_x B_k B_v B_wq B_wo out debug ws",
           "; @launch grid=(256,1,1) block=(512,1,1) lds=%d" % LDS_BYTES,
           '.amdgcn_target "amdgcn-amd-amdhsa--gfx950"',
           ".text\n.globl %s\n.p2align 8\n.type %s,@function\n%s:" % (name, name, name)]
    KV_, W_, X_, WS_, OUT_ = "s[24:27]", "s[32:35]", "s[40:43]", "s[44:47]", "s[52:55]"
    sW, sH, sB, sP, sK, sT, sId, sCnt = "s56", "s57", "s58", "s59", "s60", "s61", "s62", "s63"
    mB1, mB0 = "s[64:65]", "s[66:67]"
    sM, sL, sIn, sPub, sIt, sTag = "s68", "s69", "s71", "s72", "s73", "s76"
    vLane16, vG, vCc = "v1", "v2", "v3"
    MASK = [4, 5, 6, 7]
    AOP = [8, 12]
    vLdsW = 16
    T = 17
    def rng(a, n): return "v[%d:%d]" % (a, a+n-1)
    def stamp(k):
        if stamps: s("s_memrealtime s[%d:%d]" % (80+2*k, 81+2*k))
    def tr():
        if trace:
            s("s_memrealtime s[96:97]")
            s("s_waitcnt lgkmcnt(0)")
            s("s_mov_b32 m0, s79")
            e.ins("v_writelane_b32 v26, s96, m0", w=["v26"], r=["s96"], kind='valu')
            s("s_add_u32 s79, s79, 1")
    def buildA(buf, src, lane):
        for w in range(4):
            v("v_and_b32_dpp v%d, v%d, v%d row_newbcast:%d row_mask:0xf bank_mask:0xf" % (AOP[buf]+w, src, MASK[w], lane))
    def make_masks():
        v("v_and_b32 v%d, 1, %s" % (T, vCc))
        v("v_lshlrev_b32 v%d, 4, v%d" % (T, T))
        v("v_mov_b32 v%d, 0xffff" % (T+1))
        v("v_lshlrev_b32 v%d, v%d, v%d" % (T, T, T+1))
        v("v_lshrrev_b32 v%d, 1, %s" % (T+1, vCc))
        for w in range(4):
            v("v_cmp_eq_u32 vcc, %d, v%d" % (w, T+1))
            v("v_cndmask_b32_e32 v%d, 0, v%d, vcc" % (MASK[w], T))
        v("v_lshlrev_b32 v%d, 5, %s" % (T, vCc))
        v("v_lshl_add_u32 v%d, %s, 4, v%d" % (T, vG, T))
        s("s_and_b32 s3, %s, 3" % sW)
        s("s_lshl_b32 s3, s3, 9")
        v("v_add_u32 v%d, s3, v%d" % (vLdsW, T))
    nlab = [0]
    def lds_wait(off, n, zero, tmp, sleep=0):
        nlab[0] += 1
        a, b = "L_w%d" % nlab[0], "L_w%d_ok" % nlab[0]
        s("s_mov_b32 s70, 0")
        e.label(a)
        ds("ds_read_b32 v%d, v%d offset:%d" % (tmp, zero, off))
        s("s_add_u32 s70, s70, 1")
        s("s_waitcnt lgkmcnt(0)")
        v("v_readfirstlane_b32 s3, v%d" % tmp)
        s("s_cmp_ge_u32 s70, 0x100000")
        s("s_cbranch_scc1 %s" % b)
        s("s_cmp_ge_u32 s3, %d" % n)
        if sleep:
            s("s_cbranch_scc1 %s" % b)
            s("s_sleep %d" % sleep)
            s("s_branch %s" % a)
        else:
            s("s_cbranch_scc0 %s" % a)
        e.label(b)
    def lds_signal(off, zero, one):
        s("s_mov_b64 exec, 1")
        ds("ds_add_u32 v%d, v%d offset:%d" % (zero, one, off))
        s("s_mov_b64 exec, -1")
    def ml_wait(br, n, dst, zero, tmp, sleep=0):
        nlab[0] += 1
        a, b = "L_m%d" % nlab[0], "L_m%d_ok" % nlab[0]
        s("s_mov_b32 s70, 0")
        e.label(a)
        ds("ds_read_b128 %s, v%d offset:%d" % (rng(dst, 4), zero, LDS_ML[br]))
        ds("ds_read_b128 %s, v%d offset:%d" % (rng(dst+4, 4), zero, LDS_ML[br] + 16))
        if n == 5: ds("ds_read_b64 %s, v%d offset:%d" % (rng(dst+8, 2), zero, LDS_ML[br] + 32))
        s("s_add_u32 s70, s70, 1")
        s("s_waitcnt lgkmcnt(0)")
        v("v_min3_u32 v%d, v%d, v%d, v%d" % (tmp, dst+1, dst+3, dst+5))
        v("v_min3_u32 v%d, v%d, v%d, v%d" % (tmp, tmp, dst+7, dst+9 if n == 5 else dst+7))
        s("s_cmp_ge_u32 s70, 0x100000")
        v("v_readfirstlane_b32 s3, v%d" % tmp)
        s("s_cbranch_scc1 %s" % b)
        s("s_cmp_lg_u32 s3, 0")
        if sleep:
            s("s_cbranch_scc1 %s" % b)
            s("s_sleep %d" % sleep)
            s("s_branch %s" % a)
        else:
            s("s_cbranch_scc0 %s" % a)
        e.label(b)
    def ml_combine(n, src, M, L):
        v("v_max3_f32 v%d, v%d, v%d, v%d" % (M, src, src+2, src+4))
        v("v_max3_f32 v%d, v%d, v%d, v%d" % (M, M, src+6, src+8 if n == 5 else src+6))
        for u in range(n): v("v_sub_f32 v%d, v%d, v%d" % (src+2*u, src+2*u, M))
        for u in range(n): v("v_exp_f32 v%d, v%d" % (src+2*u, src+2*u))
        v("v_mul_f32 v%d, v%d, v%d" % (L, src, src+1))
        for u in range(1, n): v("v_fmac_f32 v%d, v%d, v%d" % (L, src+2*u, src+2*u+1))
    def wave_reduce(op, r, dst):
        for sh in (8, 4, 2, 1):
            v("%s_dpp v%d, v%d, v%d row_ror:%d row_mask:0xf bank_mask:0xf" % (op, r, r, r, sh))
        v("%s_dpp v%d, v%d, v%d row_bcast:15 row_mask:0xa bank_mask:0xf" % (op, r, r, r))
        v("%s_dpp v%d, v%d, v%d row_bcast:31 row_mask:0xc bank_mask:0xf" % (op, r, r, r))
        v("v_readlane_b32 %s, v%d, 63" % (dst, r))
    s("s_cmp_ge_u32 s2, 256")
    s("s_cbranch_scc1 L_done")
    stamp(0)
    s("s_load_dwordx16 s[4:19], s[0:1], 0")
    s("s_load_dwordx4 s[20:23], s[0:1], 64")
    s("s_load_dwordx2 s[48:49], s[0:1], 80")
    s("s_load_dwordx2 s[50:51], s[0:1], 96")
    v("v_lshrrev_b32 v%d, 6, v0" % T)
    v("v_and_b32 v%d, 63, v0" % (T+1))
    v("v_readfirstlane_b32 %s, v%d" % (sW, T))
    v("v_lshlrev_b32 %s, 4, v%d" % (vLane16, T+1))
    v("v_lshrrev_b32 %s, 4, v%d" % (vG, T+1))
    v("v_and_b32 %s, 15, v0" % vCc)
    s("s_xor_b32 s3, s2, %d" % hx)
    s("s_and_b32 %s, s3, 7" % sH)
    s("s_bfe_u32 %s, s2, 0x10003" % sP)
    s("s_lshr_b32 s3, s2, 4")
    s("s_lshl_b32 s3, s3, 3")
    s("s_or_b32 %s, s3, %s" % (sId, sH))
    s("s_and_b32 %s, %s, 31" % (sH, sId))
    s("s_lshr_b32 %s, %s, 5" % (sB, sId))
    s("s_mov_b32 s46, 0x%x" % (TRACE_OFF + 256*2*256))
    s("s_mov_b32 s47, 0x20000")
    s("s_lshl_b32 s78, %s, 7" % sB)
    s("s_add_u32 s78, s78, %d" % EPOCH_OFF)
    if trace:
        v("v_mov_b32 v26, 0")
        s("s_mov_b32 s79, 0")
    s("s_cmp_ge_u32 %s, 4" % sW)
    s("s_cbranch_scc1 L_helper")
    Q, S, ML, Pp, Pa, Pb, Pc, Pt, ACC, vC, vXL, vZ, vOne = 28, 32, 40, 48, 52, 54, 56, 58, 60, 27, 25, 24, 23
    RING = 64
    NC = 64 + XL
    s("s_lshl_b32 s70, %s, 20" % sId)
    s("s_mov_b32 s26, 0x100000")
    s("s_mov_b32 s27, 0x20000")
    NP = len(PB); CH = 4 << NP
    tb = [b for b in range(14, 20) if b != HB and b not in PB]
    holes = sum(1 << b for b in [HB] + list(PB))
    co = sum(((CO >> i) & 1) << tb[i] for i in range(len(tb)))
    s("s_lshl_b32 %s, %s, 12" % (sK, sW))
    s("s_and_b32 s3, %s, 1" % sW)
    s("s_mul_i32 s3, s3, %d" % co)
    s("s_add_u32 %s, %s, s3" % (sK, sK))
    s("s_lshl_b32 s3, %s, %d" % (sP, HB))
    v("v_add_u32 v22, s3, %s" % vLane16)
    KVO = [22, 0, 27, 26][:1 << NP]
    assert NP < 2 or not trace
    for k in range(1, 1 << NP):
        v("v_add_u32 v%d, 0x%x, v22" % (KVO[k], sum(1 << PB[j] for j in range(NP) if k >> j & 1)))
    s("s_mov_b32 %s, %d" % (sCnt, NC//CH))
    s("s_waitcnt lgkmcnt(0)")
    s("s_add_u32 s24, s6, s70"); s("s_addc_u32 s25, s7, 0")
    def slot_of(n):
        if n < R: return n
        if n < R + XL: return 24 + (n - R) % 16
        if n < NC + 8: return n - R - XL
        return 16 + (n - NC) % 16
    def slot(n): return rng(RING + 4*slot_of(n), 4)
    issued = [0]
    deep = [False]
    steer = [False]
    vFr, vPr = RING + 6, RING + 7
    def report_progress(k):
        s("s_waitcnt lgkmcnt(0)")
        s("s_add_u32 s39, s39, %d" % k)
        v("v_readfirstlane_b32 s74, v%d" % vFr)
        v("v_mov_b32 v%d, s39" % vPr)
        ds("ds_write_b32 v%d, v%d offset:%d" % (vXL, vPr, LDS_C))
        ds("ds_read_b32 v%d, v%d offset:%d" % (vFr, vXL, LDS_C + 16))
    phase = [0]
    if isinstance(DA, int): DA = (DA,)
    if isinstance(DK, int): DK = (DK,)
    def issue_kv():
        m = issued[0]; issued[0] += 1
        d = D[m % len(D)]
        if DA and phase[0] == 0: d = DA[m % len(DA)]
        if DK and phase[0] == 1: d = DK[m % len(DK)]
        if DP and m < R + XL: d = DP[min(m//8, len(DP)-1)]
        if DE and deep[0]: d = DE
        if steer[0]:
            nlab[0] += 1
            e.wait_vm("kv%d" % (m - d - 1))
            s("s_add_u32 s75, s75, s74")
            s("s_cbranch_scc1 L_f%d" % nlab[0])
            s("s_waitcnt vmcnt(%d)" % (d - 1))
            e.label("L_f%d" % nlab[0])
        elif m - d >= 0: e.wait_vm("kv%d" % (m - d))
        i = m % CH
        if PO == 0: sel, imm = i % (1 << NP), (i >> NP)*1024
        else: sel, imm = i >> 2, (i % 4)*1024
        vKV = "v%d" % KVO[sel]
        if R <= m < R + XL:
            s("s_add_u32 m0, s38, %d" % ((m - R)*1024 - imm))
            s("s_nop 0")
            e.vm_op("buffer_load_dwordx4 %s, %s, %s offen offset:%d %s lds" % (vKV, KV_, sK, imm, kvflags), r=[vKV, KV_, sK], tag="kv%d" % m)
        else:
            e.load("buffer_load_dwordx4", slot(m), vKV, KV_, sK, imm, kvflags, tag="kv%d" % m)
        if i == CH - 1:
            if any(b > tb[0] for b in [HB] + list(PB)): s("s_or_b32 %s, %s, 0x%x" % (sK, sK, holes))
            s("s_add_u32 %s, %s, 0x%x" % (sK, sK, 1 << tb[0]))
            s("s_and_b32 %s, %s, 0x%x" % (sK, sK, 0xfffff & ~holes))
            if m >= NC:
                s("s_add_u32 %s, %s, 1" % (sCnt, sCnt))
                s("s_cmp_lg_u32 %s, s40" % sCnt)
                s("s_cselect_b64 s[24:25], s[24:25], s[28:29]")
                s("s_cselect_b64 s[28:29], s[28:29], s[30:31]")
                s("s_cselect_b64 s[30:31], s[30:31], s[36:37]")
                s("s_cselect_b64 s[36:37], s[36:37], s[42:43]")
                s("s_cselect_b32 s3, 0, s41")
                s("s_cselect_b32 s41, s41, %d" % (128//CH))
                s("s_add_u32 s40, s40, s3")
    for m in range(DP[0] if DP else min(DA or D)): issue_kv()
    stamp(1)
    s("s_add_u32 s28, s8, s70"); s("s_addc_u32 s29, s9, 0")
    s("s_add_u32 s30, s16, s70"); s("s_addc_u32 s31, s17, 0")
    s("s_add_u32 s36, s18, s70"); s("s_addc_u32 s37, s19, 0")
    s("s_mov_b64 s[42:43], s[28:29]")
    s("s_mov_b32 s40, %d" % (128//CH))
    s("s_lshl_b32 s41, %s, %d" % (sP, 2 - NP))
    s("s_add_u32 s41, s41, %d" % (112//CH))
    s("s_mul_i32 s38, %s, %d" % (sW, XL*1024))
    s("s_add_u32 s38, s38, %d" % LDS_X)
    v("v_add_u32 v%d, s38, %s" % (vXL, vLane16))
    s("s_barrier")
    s("s_mov_b32 s44, s50"); s("s_mov_b32 s45, s51")
    s("s_load_dword %s, s[50:51], s78" % sTag)
    s("s_mov_b32 s64, 0xcccccccc"); s("s_mov_b32 s65, 0xcccccccc")
    s("s_mov_b32 s66, 0xaaaaaaaa"); s("s_mov_b32 s67, 0xaaaaaaaa")
    make_masks()
    s("s_mov_b32 s72, 0x%08x" % f2u(math.log2(math.e)/math.sqrt(128.0)))
    v("v_mov_b32 v%d, 0" % vZ)
    v("v_mov_b32 v%d, 1" % vOne)
    while issued[0] < R + XL - spare:
        if issued[0] % 8 == 0: tr()
        issue_kv()
    tr()
    def read_q(br, nissue):
        lds_wait(LDS_F + 4*br, 4, vZ, T+2)
        v("v_lshlrev_b32 v%d, 5, %s" % (T, vCc))
        QT = S
        for u in range(4):
            ds("ds_read_b128 %s, v%d offset:%d" % (rng(QT+8*u, 4), T, LDS_Q[br] + u*512))
            ds("ds_read_b128 %s, v%d offset:%d" % (rng(QT+8*u+4, 4), T, LDS_Q[br] + u*512 + 16))
        if nissue: issue_kv()
        for u in range(1, 4):
            s("s_waitcnt lgkmcnt(%d)" % (6 - 2*u))
            for k in range(0, 8, 2):
                v("v_pk_add_f32 %s, %s, %s" % (rng(QT+k, 2), rng(QT+k, 2), rng(QT+8*u+k, 2)))
        for k in range(nissue - 1): issue_kv()
        for k in range(4):
            v("v_cvt_pk_bf16_f32 v%d, v%d, v%d" % (Q+k, QT+2*k, QT+2*k+1))
    read_q(0, spare)
    stamp(2)
    pend = []
    def lvlA(n):
        d = Pa + (((n % 16) >> 1) & 1)
        v("v_add_f32_dpp v%d, v%d, v%d row_ror:8 row_mask:0xf bank_mask:0x3" % (d, Pp+(n-1) % 4, Pp+(n-1) % 4))
        v("v_add_f32_dpp v%d, v%d, v%d row_ror:8 row_mask:0xf bank_mask:0xc" % (d, Pp+n % 4, Pp+n % 4))
        if n % 4 == 3: pend.append(("B", n))
    def lvlB(n):
        d = Pb + (((n % 16) >> 2) & 1)
        v("v_add_f32_dpp v%d, v%d, v%d row_half_mirror row_mask:0xf bank_mask:0x5" % (d, Pa, Pa))
        v("v_add_f32_dpp v%d, v%d, v%d row_half_mirror row_mask:0xf bank_mask:0xa" % (d, Pa+1, Pa+1))
        if n % 8 == 7: pend.append(("C", n))
    def lvlC(n):
        d = Pc + (((n % 16) >> 3) & 1)
        v("v_add_f32_dpp v%d, v%d, v%d quad_perm:[2,3,0,1] row_mask:0xf bank_mask:0xf" % (Pt, Pb, Pb))
        v("v_add_f32_dpp v%d, v%d, v%d quad_perm:[2,3,0,1] row_mask:0xf bank_mask:0xf" % (Pt+1, Pb+1, Pb+1))
        v("v_cndmask_b32_e64 v%d, v%d, v%d, %s" % (d, Pt, Pt+1, mB1))
        if n % 16 == 15: pend.append(("D", n))
    def lvlD(n):
        v("v_add_f32_dpp v%d, v%d, v%d quad_perm:[1,0,3,2] row_mask:0xf bank_mask:0xf" % (Pt, Pc, Pc))
        v("v_add_f32_dpp v%d, v%d, v%d quad_perm:[1,0,3,2] row_mask:0xf bank_mask:0xf" % (Pt+1, Pc+1, Pc+1))
        for k in range(7): v("v_mov_b32 v%d, v%d" % (S+k, S+k+1))
        v("v_cndmask_b32_e64 v%d, v%d, v%d, %s" % (S+7, Pt, Pt+1, mB0))
    def run_pend():
        k, n = pend.pop(0)
        {"A": lvlA, "B": lvlB, "C": lvlC, "D": lvlD}[k](n)
    def kstep(n, do_issue):
        if do_issue: issue_kv()
        if R <= n + 4 < R + XL:
            e.wait_vm("kv%d" % (n + 4))
            ds("ds_read_b128 %s, v%d offset:%d" % (slot(n + 4), vXL, (n + 4 - R)*1024))
        if R <= n < R + XL: s("s_waitcnt lgkmcnt(%d)" % min(4, R + XL - 1 - n))
        e.wait_vm("kv%d" % n)
        base = RING + 4*slot_of(n)
        p = Pp + n % 4
        v("v_dot2_f32_bf16 v%d, v%d, v%d, 0" % (p, base, Q))
        for k in range(1, 4):
            v("v_dot2_f32_bf16 v%d, v%d, v%d, v%d" % (p, base+k, Q+k, p))
        if pend: run_pend()
        if n % 2 == 1: pend.append(("A", n))
    def loop(label, count, body):
        s("s_mov_b32 %s, %d" % (sIt, count))
        e.fence()
        e.label(label)
        e.vm_done -= 8
        tr()
        steer[0] = ctl and not deep[0]
        body()
        steer[0] = False
        s("s_sub_u32 %s, %s, 1" % (sIt, sIt))
        s("s_cmp_lg_u32 %s, 0" % sIt)
        e.fence()
        s("s_cbranch_scc1 %s" % label)
    pos = [0]
    def kbody():
        for n in range(pos[0], pos[0]+16):
            if steer[0] and n % P == 0: report_progress(P)
            kstep(n, True)
        pos[0] += 16
    vM = T+3
    def softmax(br):
        issue_kv()
        while pend: run_pend()
        v("v_max3_f32 v%d, v%d, v%d, v%d" % (T, S, S+1, S+2))
        v("v_max3_f32 v%d, v%d, v%d, v%d" % (T, T, S+3, S+4))
        v("v_max3_f32 v%d, v%d, v%d, v%d" % (T, T, S+5, S+6))
        v("v_max_f32 v%d, v%d, v%d" % (T, T, S+7))
        wave_reduce("v_max_f32", T, sM)
        issue_kv()
        v("v_mov_b32 v%d, %s" % (vM, sM))
        v("v_mul_f32 v%d, s72, v%d" % (vM, vM))
        for k in range(8): v("v_fma_f32 v%d, v%d, s72, -v%d" % (S+k, S+k, vM))
        for k in range(8): v("v_exp_f32 v%d, v%d" % (S+k, S+k))
        issue_kv()
        v("v_add_f32 v%d, v%d, v%d" % (T, S, S+1))
        for k in range(2, 8): v("v_add_f32 v%d, v%d, v%d" % (T, T, S+k))
        for k in range(8): v("v_cvt_pk_bf16_f32 v%d, v%d, v%d" % (S+k, S+k, S+k))
        wave_reduce("v_add_f32", T, sL)
        issue_kv()
        v("v_mov_b32 v%d, %s" % (vM+1, sL))
        s("s_lshl_b32 s3, %s, 3" % sW)
        v("v_mov_b32 v%d, s3" % T)
        s("s_mov_b64 exec, 1")
        ds("ds_write_b64 v%d, %s offset:%d" % (T, rng(vM, 2), LDS_ML[br]))
        s("s_mov_b64 exec, -1")
        for k in range(4): v("v_mov_b32 v%d, 0" % (ACC+k))
        buildA(0, S, bitrev4(0))
    def vbody(last=False, steps=range(16)):
        for i in range(16):
            n = pos[0] + i
            if steer[0] and i % P == 0: report_progress(P)
            elif ctl and not steer[0] and i == 0: report_progress(16)
            if i in steps: issue_kv()
            e.wait_vm("kv%d" % n)
            v("v_mfma_f32_16x16x32_bf16 %s, %s, %s, %s" % (rng(ACC, 4), rng(AOP[i & 1], 4), slot(n), rng(ACC, 4)))
            if i < 15: buildA((i+1) & 1, S, bitrev4(i+1))
            elif not last:
                buildA(0, S+1, bitrev4(0))
                for k in range(7): v("v_mov_b32 v%d, v%d" % (S+k, S+k+1))
        pos[0] += 16
    def scale(br, nissue=2):
        if nissue > 0: issue_kv()
        ml_wait(br, 4, ML, vZ, T+1)
        if nissue > 1: issue_kv()
        v("v_max3_f32 v%d, v%d, v%d, v%d" % (T, ML, ML+2, ML+4))
        v("v_max_f32 v%d, v%d, v%d" % (T, T, ML+6))
        v("v_sub_f32 v%d, v%d, v%d" % (vM, vM, T))
        v("v_exp_f32 v%d, v%d" % (vM, vM))
    def write_o(off):
        for k in range(4): v("v_mul_f32 v%d, v%d, v%d" % (ACC+k, ACC+k, vM))
        s("s_mov_b32 exec_hi, 0")
        ds("ds_write_b128 v%d, %s offset:%d" % (vLdsW, rng(ACC, 4), off))
        s("s_mov_b64 exec, -1")
    for n in range(NC):
        if n % 16 == 0: tr()
        kstep(n, (n*24)//NC != ((n-1)*24)//NC if n > 1 else n == 1)
    assert issued[0] == NC + 8
    pos[0] = NC
    if ctl:
        s("s_lshl_b32 s3, %s, 2" % sW)
        v("v_mov_b32 v%d, s3" % vXL)
        v("v_mov_b32 v%d, 0" % vFr)
        s("s_mov_b32 s39, %d" % NC)
        s("s_lshl_b32 s75, %s, 30" % sW)
    st0 = [(k, n % 16) for k, n in pend]
    loop("L_kA", (128 - NC)//16, kbody)
    assert st0 == [(k, n % 16) for k, n in pend]
    softmax(0)
    loop("L_vA", 6, vbody)
    def send_o():
        issue_kv()
        write_o(LDS_OS)
        issue_kv()
        s("s_waitcnt lgkmcnt(0)")
        lds_signal(LDS_F + 8, vZ, vOne)
    def blockB_keys(tag):
        read_q(1, 2)
        assert issued[0] == pos[0] + 8
        pend[:] = [(k, pos[0] - 16 + i) for k, i in st0]
        phase[0] = 1
        loop("L_kB" + tag, 8, kbody)
        phase[0] = 2
        softmax(1)
    state = (list(e.vm), e.vm_done, issued[0], pos[0])
    s("s_cmp_eq_u32 %s, 0" % sP)
    s("s_cbranch_scc1 L_half0")
    vbody()
    scale(0)
    tr()
    vbody(True, (0, 2, 4, 7, 10, 13))
    send_o()
    stamp(3)
    blockB_keys("1")
    loop("L_vB1", 7 - ke, vbody)
    deep[0] = True
    if ke: loop("L_vB1d", ke, vbody)
    lds_signal(LDS_F + 12, vZ, vOne)
    scale(1)
    tr()
    vbody(True, (0, 1))
    e.fence()
    s("s_branch L_last")
    e.fence()
    e.label("L_half0")
    e.vm, e.vm_done, issued[0], pos[0] = list(state[0]), state[1], state[2], state[3]
    deep[0] = False; phase[0] = 0
    SV = RING
    vbody(True, (0, 1, 3, 4, 6, 7, 9, 11, 13, 15))
    v("v_mov_b32 v%d, v%d" % (SV+4, S+1))
    v("v_mov_b32 v%d, v%d" % (SV+5, vM))
    for k in range(4): v("v_mov_b32 v%d, v%d" % (SV+k, ACC+k))
    stamp(3)
    blockB_keys("0")
    loop("L_vB0", 7, vbody)
    deep[0] = bool(ke)
    scale(1)
    tr()
    vbody(True, range(14))
    deep[0] = True
    send_o()
    v("v_mov_b32 v%d, v%d" % (S, SV+4))
    v("v_mov_b32 v%d, v%d" % (vM, SV+5))
    for k in range(4): v("v_mov_b32 v%d, v%d" % (ACC+k, SV+k))
    scale(0)
    assert issued[0] == pos[0] + 16
    buildA(0, S, bitrev4(0))
    vbody(True, ())
    e.fence()
    e.label("L_last")
    tr()
    stamp(4)
    write_o(LDS_OF)
    s("s_waitcnt lgkmcnt(0)")
    s("s_barrier")
    s("s_cmp_lg_u32 %s, 0" % sW)
    s("s_cbranch_scc1 L_done")
    if not stamps:
        s("s_cmp_ge_u32 %s, 20" % sH)
        s("s_cbranch_scc1 L_done")
    s("s_lshl_b32 %s, %s, 2" % (sIn, sP))
    s("s_add_u32 %s, %s, %s" % (sIn, sIn, sB))
    s("s_mul_i32 %s, %s, 20" % (sIn, sIn))
    s("s_add_u32 %s, %s, %s" % (sIn, sIn, sH))
    s("s_lshl_b32 %s, %s, 12" % (sIn, sIn))
    s("s_mov_b32 s52, s48"); s("s_mov_b32 s53, s49"); s("s_mov_b32 s54, %d" % (4*2560)); s("s_mov_b32 s55, 0x20000")
    s("s_mul_i32 s38, %s, 2560" % sB)
    s("s_mul_i32 s3, %s, 1280" % sP)
    s("s_add_u32 s38, s38, s3")
    s("s_lshl_b32 s3, %s, 6" % sH)
    s("s_add_u32 s38, s38, s3")
    v("v_lshrrev_b32 v%d, 1, %s" % (T+2, vLane16))
    s("s_mov_b32 %s, 0" % sIt)
    s("s_add_u32 %s, %s, 1" % (sTag, sTag))
    s("s_and_b32 s77, %s, 0xff" % sTag)
    s("s_barrier")
    if stamps:
        s("s_cmp_ge_u32 %s, 20" % sH)
        s("s_cbranch_scc1 L_stamps")
    G0 = RING
    e.label("L_poll")
    for k in range(4):
        e.ins("buffer_load_dwordx4 %s, %s, %s, %s offen offset:%d sc1" % (rng(G0+4*k, 4), vLane16, WS_, sIn, k*1024), w=[rng(G0+4*k, 4)], r=[vLane16, sIn], kind='vmem')
    for k in range(4):
        s("s_waitcnt vmcnt(%d)" % (3-k))
        for j in range(4): v("v_xor_b32 v%d, s77, v%d" % (G0+4*k+j, G0+4*k+j))
        if k == 0: v("v_or_b32 v%d, v%d, v%d" % (T, G0, G0+1))
        else: v("v_or3_b32 v%d, v%d, v%d, v%d" % (T, T, G0+4*k, G0+4*k+1))
        v("v_or3_b32 v%d, v%d, v%d, v%d" % (T, T, G0+4*k+2, G0+4*k+3))
        if k:
            v("v_pk_add_f32 %s, %s, %s" % (rng(G0+32, 2), rng(G0+32 if k > 1 else G0, 2), rng(G0+4*k, 2)))
            v("v_pk_add_f32 %s, %s, %s" % (rng(G0+34, 2), rng(G0+34 if k > 1 else G0+2, 2), rng(G0+4*k+2, 2)))
    v("v_and_b32 v%d, 0xff, v%d" % (T, T))
    v("v_cmp_ne_u32 vcc, 0, v%d" % T)
    s("s_add_u32 %s, %s, 1" % (sIt, sIt))
    s("s_cmp_ge_u32 %s, 0x40000" % sIt)
    s("s_cbranch_scc1 L_poll_ok")
    e.ins("s_cbranch_vccnz L_poll", r=["vcc"], kind='salu')
    e.label("L_poll_ok")
    stamp(5)
    F = G0 + 32
    for k in range(4):
        v("v_add_f32_dpp v%d, v%d, v%d row_ror:8 row_mask:0xf bank_mask:0xf" % (F+k, F+k, F+k))
    for sw in ("v_permlane16_swap_b32", "v_permlane32_swap_b32"):
        for k in range(4): v("v_mov_b32 v%d, v%d" % (F+4+k, F+k))
        for k in range(4): v("%s v%d, v%d" % (sw, F+k, F+4+k))
        for k in range(4): v("v_add_f32 v%d, v%d, v%d" % (F+k, F+k, F+4+k))
    v("v_cvt_pk_bf16_f32 v%d, v%d, v%d" % (F, F, F+1))
    v("v_cvt_pk_bf16_f32 v%d, v%d, v%d" % (F+1, F+2, F+3))
    v("v_mov_b32 v%d, %s" % (T+3, sTag))
    s("s_mov_b64 exec, 0xff")
    e.ins("buffer_store_dwordx2 %s, v%d, %s, s38 offen %s" % (rng(F, 2), T+2, OUT_, outf), r=[rng(F, 2), "v%d" % (T+2), "s38"], kind='vmem')
    s("s_lshl_b32 s3, %s, 1" % sH)
    s("s_add_u32 s3, s3, %s" % sP)
    s("s_cmp_lg_u32 s3, 1")
    s("s_cbranch_scc1 %s" % ("L_stamps" if stamps else "L_done"))
    s("s_mov_b64 exec, 1")
    e.ins("buffer_store_dword v%d, v%d, %s, s78 offen sc1" % (T+3, vZ, WS_), r=["v%d" % (T+3), "v%d" % vZ, "s78"], kind='vmem')
    if stamps: s("s_branch L_stamps")
    s("s_endpgm")
    e.fence()
    e.label("L_helper")
    e.vm = []; e.vm_done = -1
    XP, ACO, WR, RES = 28, 36, 64, 240
    vWQ, vWO, vX, hZ, hOne = 56, 57, 58, 59, 60
    vO, vR, vRd, vPub, vTm, vTg = 18, 19, 20, 21, 22, 23
    def wreg(j): return rng(WR + 4*j, 4)
    sU = "s39"
    s("s_sub_u32 %s, %s, 4" % (sU, sW))
    s("s_mov_b32 s34, 0x%x" % (640*8192)); s("s_mov_b32 s35, 0x20000")
    s("s_mov_b32 s42, 0x%x" % (4*1280)); s("s_mov_b32 s43, 0x20000")
    v("v_lshlrev_b32 v%d, 4, %s" % (T, vCc))
    v("v_lshl_add_u32 v%d, %s, 13, v%d" % (vWQ, vG, T))
    v("v_mul_u32_u24 v%d, 1280, %s" % (vWO, vG))
    v("v_add_u32 v%d, v%d, v%d" % (vWO, vWO, T))
    v("v_lshl_add_u32 v%d, %s, 2, %s" % (vX, vCc, vG))
    v("v_lshlrev_b32 v%d, 1, v%d" % (vX, vX))
    s("s_mul_i32 s3, %s, %d" % (sU, 160*8192))
    s("s_lshl_b32 s36, %s, 8" % sH)
    s("s_add_u32 s36, s36, s3")
    s("s_mov_b32 %s, s36" % sT)
    s("s_mul_i32 s38, %s, 1280" % sB)
    s("s_mul_i32 s3, %s, 320" % sU)
    s("s_add_u32 s38, s38, s3")
    v("v_mov_b32 v%d, 0" % hZ)
    v("v_mov_b32 v%d, 1" % hOne)
    v("v_lshrrev_b32 v%d, 2, %s" % (T+1, vLane16))
    s("s_waitcnt lgkmcnt(0)")
    s("s_cmp_eq_u32 %s, 0" % sP)
    s("s_cselect_b64 s[32:33], s[10:11], s[20:21]")
    s("s_cselect_b64 s[40:41], s[4:5], s[14:15]")
    s("s_cselect_b64 s[30:31], s[12:13], s[22:23]")
    for k in range(3):
        e.load("buffer_load_ushort", "v%d" % (XP+k), "v%d" % vX, X_, "s38", 128*k, "", tag="x%d" % k)
    wi = [0]
    def issue_w():
        m = wi[0]
        if m >= 80: return
        wi[0] += 1
        kind, j = m//40, m % 40
        d = wqD if kind == 0 else wD
        if m - d >= 0: e.wait_vm("w%d" % (m - d))
        if m == 40:
            s("s_mov_b64 s[32:33], s[30:31]"); s("s_mov_b32 %s, s37" % sT)
        if kind == 0:
            e.load("buffer_load_dwordx4", wreg(j), "v%d" % vWQ, W_, sT, 0, wflags, tag="w%d" % m)
            s("s_add_u32 %s, %s, 0x8000" % (sT, sT))
        else:
            e.load("buffer_load_dwordx4", wreg(j), "v%d" % vWO, W_, sT, (j % 5)*256, wflags, tag="w%d" % m)
            if j % 5 == 4: s("s_add_u32 %s, %s, %d" % (sT, sT, 4*1280))
    HT, MW = 244, 224
    for j in range(wqD): issue_w()
    ds("ds_write_b32 v%d, v%d offset:%d" % (T+1, hZ, LDS_ML[0]))
    s("s_lshl_b32 s27, %s, 11" % sP)
    s("s_xor_b32 s25, s27, 2048")
    s("s_lshl_b32 s3, %s, 9" % sU)
    s("s_add_u32 s3, s3, s25")
    v("v_lshl_add_u32 v%d, v%d, 1, s3" % (T+1, T+1))
    v("v_mov_b32 v%d, 0" % (hZ+3))
    v("v_mov_b32 v%d, 0" % (hZ+4))
    ds("ds_write_b64 v%d, %s" % (T+1, rng(hZ+3, 2)))
    s("s_waitcnt lgkmcnt(0)")
    s("s_barrier")
    s("s_load_dword %s, s[50:51], s78" % sTag)
    s("s_mov_b32 s44, s50"); s("s_mov_b32 s45, s51")
    s("s_lshl_b32 s37, %s, 7" % sH)
    s("s_lshl_b32 s3, %s, 5" % sU)
    s("s_add_u32 s37, s37, s3")
    s("s_mul_i32 s37, s37, 1280")
    make_masks()
    v("v_and_b32 v%d, 7, %s" % (vO, vCc))
    v("v_lshl_add_u32 v%d, v%d, 2, %s" % (vO, vO, vG))
    v("v_lshlrev_b32 v%d, 2, v%d" % (vO, vO))
    s("s_lshl_b32 s3, %s, 7" % sU)
    v("v_add_u32 v%d, s3, v%d" % (vO, vO))
    s("s_mul_i32 s3, %s, %d" % (sU, 2560-512))
    v("v_add_u32 v%d, s3, v%d" % (vR, vLdsW))
    v("v_subrev_u32 v%d, 256, v0" % T)
    v("v_lshlrev_b32 v%d, 4, v%d" % (vRd, T))
    v("v_lshrrev_b32 v%d, 3, v%d" % (vPub, T))
    v("v_lshlrev_b32 v%d, 12, v%d" % (vPub, vPub))
    v("v_and_b32 v%d, 7, v%d" % (vTm, T))
    v("v_lshl_add_u32 v%d, v%d, 4, v%d" % (vPub, vTm, vPub))
    v("v_cmp_gt_u32 vcc, 160, v%d" % T)
    s("s_mov_b64 s[74:75], vcc")
    s("s_lshl_b32 s3, %s, 2" % sP)
    s("s_add_u32 s3, s3, %s" % sB)
    s("s_mul_i32 %s, s3, %d" % (sPub, 20*4096))
    s("s_lshl_b32 s3, %s, 7" % sH)
    s("s_add_u32 %s, %s, s3" % (sPub, sPub))
    s("s_lshl_b32 s28, s2, 11")
    s("s_add_u32 s28, s28, %d" % MAIL_OFF)
    s("s_xor_b32 s29, s28, 0x4000")
    def qproj():
        e.wait_vm("x2")
        for k in range(3): v("v_lshl_or_b32 v%d, v%d, 16, v%d" % (XP+k, XP+k, XP+k))
        buildA(0, XP, 0)
        for j in range(40):
            if j+1 < 40: buildA((j+1) & 1, XP + (j+1)//16, (j+1) % 16)
            e.wait_vm("w%d" % j)
            if j % 8 == 0: tr()
            v("v_mfma_f32_16x16x32_bf16 %s, %s, %s, %s" % (rng(ACO, 4), rng(AOP[j & 1], 4), wreg(j), rng(ACO, 4) if j else "0"))
            issue_w()
            if local and j == 30: e.load("buffer_load_dword", "v%d" % (MW+4), "v%d" % hZ, WS_, "s24", 0, "sc1", tag="hello2")
        if local:
            e.wait_vm("hello2")
            v("v_readfirstlane_b32 s24, v%d" % (MW+4))
        v("v_add_u32 v%d, s27, v%d" % (T, vLdsW))
        if local: s("s_xor_b32 s38, s24, s77")
        s("s_lshl_b32 s3, %s, 2" % sP)
        v("v_mov_b32 v%d, s3" % (hZ+2))
        s("s_mov_b32 exec_hi, 0")
        ds("ds_write_b128 v%d, %s" % (T, rng(ACO, 4)))
        s("s_mov_b64 exec, -1")
        s("s_waitcnt lgkmcnt(0)")
        lds_signal(LDS_F, hZ+2, hOne)
    def vec_send(kind, who=None):
        nlab[0] += 1
        skip = "L_vs%d" % nlab[0]
        s("s_cmp_lg_u32 %s, 0" % sU)
        s("s_cbranch_scc1 %s" % skip)
        if who is not None:
            s("s_cmp_lg_u32 %s, %d" % (sP, who))
            s("s_cbranch_scc1 %s" % skip)
        if kind == "q":
            v("v_add_u32 v%d, s27, %s" % (T, vLane16))
            lds_wait(LDS_F, 4, hZ+2, HT)
        else:
            ml_wait(1 - who, 4, HT, hZ, HT+8, sleep=4)
            ml_combine(4, HT, MW, MW+2)
            v("v_lshlrev_b32 v%d, 8, v%d" % (MW+1, MW))
            v("v_lshlrev_b32 v%d, 8, v%d" % (MW+3, MW+2))
            v("v_add_u32 v%d, %d, %s" % (T, LDS_OS, vLane16))
            for k in range(4): v("v_and_or_b32 v%d, v%d, v%d, v%d" % (RES+k, MW+k, vTm, vTg))
            lds_wait(LDS_F + 8, 4, hZ, HT, sleep=1)
        s("s_mov_b32 exec_hi, 0")
        ds("ds_read_b128 %s, v%d" % (rng(RES, 4), T))
        for u in range(1, 4): ds("ds_read_b128 %s, v%d offset:%d" % (rng(HT+4*(u-1), 4), T, 512*u))
        for u in range(1, 4):
            s("s_waitcnt lgkmcnt(%d)" % (3-u))
            v("v_pk_add_f32 %s, %s, %s" % (rng(RES, 2), rng(RES, 2), rng(HT+4*(u-1), 2)))
            v("v_pk_add_f32 %s, %s, %s" % (rng(RES+2, 2), rng(RES+2, 2), rng(HT+4*(u-1)+2, 2)))
        if kind == "q":
            v("v_cvt_pk_bf16_f32 v%d, v%d, v%d" % (HT, RES, RES+1))
            v("v_cvt_pk_bf16_f32 v%d, v%d, v%d" % (HT+1, RES+2, RES+3))
            v("v_lshlrev_b32 v%d, 16, v%d" % (RES, HT))
            v("v_and_b32 v%d, 0xffff0000, v%d" % (RES+1, HT))
            v("v_lshlrev_b32 v%d, 16, v%d" % (RES+2, HT+1))
            v("v_and_b32 v%d, 0xffff0000, v%d" % (RES+3, HT+1))
        for k in range(4): v("v_and_or_b32 v%d, v%d, v%d, v%d" % (RES+k, RES+k, vTm, vTg))
        if kind == "o": s("s_mov_b32 exec_hi, 1")
        def st(fl): e.ins("buffer_store_dwordx4 %s, %s, %s, s29 offen offset:%d %s" % (rng(RES, 4), vLane16, WS_, 0 if kind == "q" else 1024, fl), r=[rng(RES, 4), vLane16, "s29"], kind='vmem')
        if local:
            s("s_cmp_eq_u32 s38, 0")
            s("s_cbranch_scc1 %s_l" % skip)
            st("sc1")
            s("s_branch %s_e" % skip)
            e.label(skip + "_l")
            st("")
            e.label(skip + "_e")
        else: st("sc1")
        s("s_mov_b64 exec, -1")
        s("s_waitcnt vmcnt(0)")
        e.fence()
        e.label(skip)
    def vec_recv(kind, who=None):
        nlab[0] += 1
        skip, a, b = "L_vr%d" % nlab[0], "L_vr%d_a" % nlab[0], "L_vr%d_b" % nlab[0]
        s("s_cmp_lg_u32 %s, 0" % sU)
        s("s_cbranch_scc1 %s" % skip)
        if who is not None:
            s("s_cmp_lg_u32 %s, %d" % (sP, who))
            s("s_cbranch_scc1 %s" % skip)
        if kind == "q" and who == 1 and qpre: s("s_sleep %d" % qpre)
        if kind == "o":
            if who == 0: ml_wait(1, 4, HT, hZ, HT+8, sleep=16)
            ml_wait(who, 4, HT, hZ, HT+8, sleep=4)
            ml_combine(4, HT, MW, MW+1)
            if who == 1: lds_wait(LDS_F + 12, 1, hZ, HT, sleep=4)
        s("s_mov_b32 exec_hi, %d" % (kind == "o"))
        v("v_add_u32 v%d, %s, %s" % (T, "s25" if kind == "q" else str(LDS_OR), vLane16))
        s("s_mov_b32 s70, 0")
        e.label(a)
        e.ins("buffer_load_dwordx4 %s, %s, %s, s28 offen offset:%d sc1" % (rng(HT, 4), vLane16, WS_, 0 if kind == "q" else 1024), w=[rng(HT, 4)], r=[vLane16, "s28"], kind='vmem')
        s("s_add_u32 s70, s70, 1")
        s("s_waitcnt vmcnt(0)")
        for k in range(4): v("v_xor_b32 v%d, v%d, v%d" % (HT+k, HT+k, vTg))
        v("v_or3_b32 v%d, v%d, v%d, v%d" % (HT+4, HT, HT+1, HT+2))
        v("v_or_b32 v%d, v%d, v%d" % (HT+4, HT+4, HT+3))
        v("v_and_b32 v%d, 0xff, v%d" % (HT+4, HT+4))
        v("v_cmp_ne_u32 vcc, 0, v%d" % (HT+4))
        s("s_cmp_ge_u32 s70, 0x40000")
        s("s_cbranch_scc1 %s" % b)
        e.ins("s_cbranch_vccz %s" % b, r=["vcc"], kind='salu')
        s("s_sleep %d" % (qsleep if kind == "q" else osleep))
        s("s_branch %s" % a)
        e.label(b)
        if kind == "o":
            for k in range(4): v("v_readlane_b32 s%d, v%d, 32" % (24+k, HT+k))
            s("s_bfe_u32 s25, s25, 0x80008"); s("s_bfe_u32 s27, s27, 0x80008")
            s("s_or_b32 s24, s24, s25"); s("s_or_b32 s26, s26, s27")
            v("v_max_f32 v%d, s24, v%d" % (MW+2, MW))
            v("v_sub_f32 v%d, v%d, v%d" % (MW, MW, MW+2))
            v("v_sub_f32 v%d, s24, v%d" % (MW+2, MW+2))
            v("v_exp_f32 v%d, v%d" % (MW, MW))
            v("v_exp_f32 v%d, v%d" % (MW+2, MW+2))
            v("v_mul_f32 v%d, v%d, v%d" % (MW+1, MW, MW+1))
            v("v_fma_f32 v%d, s26, v%d, v%d" % (MW+1, MW+2, MW+1))
            v("v_rcp_f32 v%d, v%d" % (MW+1, MW+1))
            s("s_mov_b32 exec_hi, 0")
            v("v_mul_f32 v%d, v%d, v%d" % (MW+2, MW+2, MW+1))
            v("v_mul_f32 v%d, v%d, v%d" % (MW, MW, MW+1))
            for k in range(4): v("v_mul_f32 v%d, v%d, v%d" % (HT+k, HT+k, MW+2))
            ds("ds_write_b32 v%d, v%d offset:%d" % (hZ, MW, LDS_F + 16))
        ds("ds_write_b128 v%d, %s" % (T, rng(HT, 4)))
        s("s_mov_b64 exec, -1")
        if kind == "q":
            v("v_xor_b32 v%d, 4, v%d" % (hZ+2, hZ+2))
            v("v_mov_b32 v%d, 4" % T)
            s("s_waitcnt lgkmcnt(0)")
            lds_signal(LDS_F, hZ+2, T)
        e.fence()
        e.label(skip)
    def oproj():
        OP = XP
        for u in range(4):
            ds("ds_read_b32 v%d, v%d offset:%d" % (OP+u, vO, LDS_OF + u*512))
        ds("ds_read_b32 v%d, v%d offset:%d" % (OP+4, vO, LDS_OR))
        ds("ds_read_b32 v%d, v%d offset:%d" % (OP+5, hZ, LDS_F + 16))
        s("s_waitcnt lgkmcnt(4)")
        v("v_add_f32 v%d, v%d, v%d" % (OP, OP, OP+1))
        s("s_waitcnt lgkmcnt(2)")
        v("v_add_f32 v%d, v%d, v%d" % (OP+2, OP+2, OP+3))
        v("v_add_f32 v%d, v%d, v%d" % (OP, OP, OP+2))
        s("s_waitcnt lgkmcnt(0)")
        v("v_fma_f32 v%d, v%d, v%d, v%d" % (OP, OP, OP+5, OP+4))
        v("v_cvt_pk_bf16_f32 v%d, v%d, v%d" % (OP, OP, OP))
        buildA(0, OP, 0)
        for jj in range(8):
            if jj+1 < 8: buildA((jj+1) & 1, OP, jj+1)
            for ct in range(5):
                a = rng(ACO+4*ct, 4)
                v("v_mfma_f32_16x16x32_bf16 %s, %s, %s, %s" % (a, rng(AOP[jj & 1], 4), wreg(jj*5+ct), a if jj else "0"))
        s("s_mov_b32 exec_hi, 0")
        for ct in range(5):
            ds("ds_write_b128 v%d, %s offset:%d" % (vR, rng(ACO+4*ct, 4), LDS_R + ct*512))
    def reduce4(dst, tmp):
        ds("ds_read_b128 %s, v%d offset:%d" % (rng(dst, 4), vRd, LDS_R))
        for u in range(1, 4):
            ds("ds_read_b128 %s, v%d offset:%d" % (rng(tmp+4*(u-1), 4), vRd, LDS_R + u*2560))
        s("s_waitcnt lgkmcnt(2)")
        v("v_pk_add_f32 %s, %s, %s" % (rng(dst, 2), rng(dst, 2), rng(tmp, 2)))
        v("v_pk_add_f32 %s, %s, %s" % (rng(dst+2, 2), rng(dst+2, 2), rng(tmp+2, 2)))
        s("s_waitcnt lgkmcnt(0)")
        v("v_pk_add_f32 %s, %s, %s" % (rng(tmp+4, 2), rng(tmp+4, 2), rng(tmp+8, 2)))
        v("v_pk_add_f32 %s, %s, %s" % (rng(tmp+6, 2), rng(tmp+6, 2), rng(tmp+10, 2)))
        v("v_pk_add_f32 %s, %s, %s" % (rng(dst, 2), rng(dst, 2), rng(tmp+4, 2)))
        v("v_pk_add_f32 %s, %s, %s" % (rng(dst+2, 2), rng(dst+2, 2), rng(tmp+6, 2)))
        for k in range(4):
            v("v_and_or_b32 v%d, v%d, v%d, v%d" % (dst+k, dst+k, vTm, vTg))
    s("s_waitcnt lgkmcnt(0)")
    s("s_add_u32 s77, %s, 1" % sTag)
    s("s_and_b32 %s, s77, 0xff" % sTag)
    v("v_mov_b32 v%d, 0xffffff00" % vTm)
    v("v_mov_b32 v%d, %s" % (vTg, sTag))
    s("s_getreg_b32 s26, hwreg(HW_REG_XCC_ID, 0, 3)")
    if local:
        s("s_lshl_b32 s24, s26, 10")
        s("s_add_u32 s24, s24, %d" % HELLO_OFF)
        s("s_lshl_b32 s3, s2, 2")
        s("s_add_u32 s24, s24, s3")
        s("s_cmp_eq_u32 %s, 0" % sU)
        s("s_cselect_b32 s3, s24, 0x40000000")
        s("s_xor_b32 s24, s24, 32")
        v("v_mov_b32 v%d, s77" % MW)
        s("s_mov_b64 exec, 1")
        e.store("buffer_store_dword", "v%d" % MW, "v%d" % hZ, WS_, "s3", 0, "", tag="hello")
        s("s_mov_b64 exec, -1")
    qproj()
    stamp(1)
    vec_send("q")
    vec_recv("q", 1)
    while wi[0] < 80:
        if wi[0] % 8 == 0: tr()
        issue_w()
    e.wait_vm("w79")
    stamp(2)
    vec_recv("q", 0)
    def control():
        s("s_cmp_lg_u32 %s, 1" % sU)
        s("s_cbranch_scc1 L_ctl_end")
        C = HT
        for k in range(4):
            s("s_mov_b32 s3, %d" % (EPOCH_OFF + 128*k))
            s("s_load_dword s%d, s[50:51], s3" % (4+k))
        s("s_lshl_b32 s8, s26, 8")
        s("s_add_u32 s8, s8, %d" % CTRL_OFF)
        s("s_lshr_b32 s9, s2, 3")
        s("s_lshl_b32 s9, s9, 2")
        s("s_add_u32 s9, s9, s8")
        s("s_mov_b32 s10, %d" % int(fb*65535))
        s("s_bitcmp0_b32 s26, 0")
        s("s_cselect_b32 s10, %d, s10" % int((fb+fe)*65535))
        v("v_lshrrev_b32 v%d, 2, %s" % (MW, vLane16))
        v("v_lshrrev_b32 v%d, 7, %s" % (MW+1, vLane16))
        s("s_waitcnt lgkmcnt(0)")
        v("v_mov_b32 v%d, s4" % (MW+2))
        for k in range(1, 4):
            v("v_mov_b32 v%d, s%d" % (MW+3, 4+k))
            v("v_cmp_eq_u32 vcc, %d, v%d" % (k, MW+1))
            v("v_cndmask_b32_e32 v%d, v%d, v%d, vcc" % (MW+2, MW+2, MW+3))
        v("v_add_u32 v%d, 1, v%d" % (MW+2, MW+2))
        v("v_and_b32 v%d, 0xff, v%d" % (MW+2, MW+2))
        s("s_mov_b32 s11, 0")
        s("s_mov_b32 s70, 0")
        e.label("L_ctl")
        ds("ds_read_b128 %s, v%d offset:%d" % (rng(C, 4), hZ, LDS_C))
        ds("ds_read_b32 v%d, v%d offset:%d" % (C+4, MW, LDS_C))
        s("s_waitcnt lgkmcnt(0)")
        v("v_add3_u32 v%d, v%d, v%d, v%d" % (C, C, C+1, C+2))
        v("v_add_u32 v%d, v%d, v%d" % (C, C, C+3))
        v("v_lshl_or_b32 v%d, v%d, 8, v%d" % (C+1, C, vTg))
        v("v_readfirstlane_b32 s12, v%d" % C)
        s("s_mov_b64 exec, 1")
        e.ins("buffer_store_dword v%d, v%d, %s, s9 offen" % (C+1, hZ, WS_), r=["v%d" % (C+1), "v%d" % hZ, "s9"], kind='vmem')
        s("s_mov_b32 exec_lo, -1")
        e.ins("buffer_load_dword v%d, v%d, %s, s8 offen sc1" % (C+2, MW, WS_), w=["v%d" % (C+2)], r=["v%d" % MW, "s8"], kind='vmem')
        s("s_add_u32 s13, s12, s11")
        s("s_lshl_b32 s13, s13, 4")
        s("s_lshl_b32 s14, s12, 5")
        s("s_sub_i32 s13, s14, s13")
        s("s_cmp_eq_u32 s11, 0")
        s("s_cselect_b32 s15, 0, -1")
        s("s_mov_b32 s11, s12")
        s("s_waitcnt vmcnt(0)")
        v("v_and_b32 v%d, 0xff, v%d" % (C+3, C+2))
        v("v_lshrrev_b32 v%d, 8, v%d" % (C+2, C+2))
        v("v_cmp_eq_u32 vcc, v%d, v%d" % (C+3, MW+2))
        for sh in (8, 4, 2, 1):
            v("v_add_u32_dpp v%d, v%d, v%d row_ror:%d row_mask:0xf bank_mask:0xf" % (C+2, C+2, C+2, sh))
        s("s_and_b32 s15, s15, vcc_lo")
        v("v_readlane_b32 s16, v%d, 0" % (C+2))
        v("v_readlane_b32 s17, v%d, 16" % (C+2))
        v("v_lshlrev_b32 v%d, 7, v%d" % (C+4, C+4))
        s("s_add_u32 s16, s16, s17")
        s("s_add_i32 s16, s16, s13")
        s("s_cmp_eq_u32 s15, -1")
        s("s_cselect_b32 s17, %d, 0" % int(gp*512))
        v("v_sub_u32 v%d, s16, v%d" % (C+4, C+4))
        v("v_mul_i32_i24 v%d, s17, v%d" % (C+4, C+4))
        v("v_add_u32 v%d, s10, v%d" % (C+4, C+4))
        v("v_max_i32 v%d, 0, v%d" % (C+4, C+4))
        v("v_min_i32 v%d, 0xffff, v%d" % (C+4, C+4))
        v("v_lshlrev_b32 v%d, 16, v%d" % (C+4, C+4))
        s("s_mov_b64 exec, 15")
        ds("ds_write_b32 v%d, v%d offset:%d" % (MW, C+4, LDS_C + 16))
        s("s_mov_b64 exec, -1")
        s("s_add_u32 s70, s70, 1")
        s("s_cmp_ge_u32 s70, 0x10000")
        s("s_cbranch_scc1 L_ctl_end")
        s("s_cmp_ge_u32 s12, %d" % (4*cend))
        s("s_cbranch_scc1 L_ctl_end")
        s("s_sleep %d" % cslp)
        s("s_branch L_ctl")
        e.fence()
        e.label("L_ctl_end")
    if ctl: control()
    vec_send("o", 1)
    vec_recv("o", 0)
    vec_send("o", 0)
    vec_recv("o", 1)
    s("s_waitcnt lgkmcnt(0)")
    if alg is not None:
        e.raw("    .p2align 6")
        for k in range(alg): s("s_nop 0")
    s("s_barrier")
    stamp(4)
    oproj()
    s("s_mov_b64 exec, s[74:75]")
    s("s_waitcnt lgkmcnt(0)")
    s("s_barrier")
    stamp(5)
    s("s_cbranch_execz L_done")
    reduce4(WR, WR+4)
    e.ins("buffer_store_dwordx4 %s, v%d, %s, %s offen sc1" % (rng(WR, 4), vPub, WS_, sPub), r=[rng(WR, 4), "v%d" % vPub, sPub], kind='vmem')
    if stamps:
        e.label("L_stamps")
        s("s_waitcnt vmcnt(0)")
        stamp(6)
        s("s_waitcnt lgkmcnt(0)")
        s("s_and_b32 s3, %s, 3" % sW)
        s("s_cmp_lg_u32 s3, 0")
        s("s_cbranch_scc1 L_done")
        s("s_lshl_b32 s38, %s, 7" % sP)
        s("s_add_u32 s38, s38, %s" % sId)
        s("s_lshl_b32 s38, s38, 1")
        s("s_lshr_b32 s3, %s, 2" % sW)
        s("s_add_u32 s38, s38, s3")
        s("s_lshl_b32 s38, s38, 6")
        s("s_add_u32 s38, s38, %d" % STAMP_OFF)
        s("s_getreg_b32 s94, hwreg(HW_REG_XCC_ID)")
        s("s_mov_b64 exec, 1")
        v("v_mov_b32 v%d, 0" % T)
        for k in range(8):
            v("v_mov_b32 v%d, s%d" % (64+k, 80+2*k))
        e.ins("buffer_store_dwordx4 %s, v%d, %s, s38 offen sc1" % (rng(64, 4), T, WS_), r=[rng(64, 4), "v%d" % T], kind='vmem')
        e.ins("buffer_store_dwordx4 %s, v%d, %s, s38 offen offset:16 sc1" % (rng(68, 4), T, WS_), r=[rng(68, 4), "v%d" % T], kind='vmem')
        if trace:
            s("s_mov_b64 exec, -1")
            s("s_sub_u32 s38, s38, %d" % STAMP_OFF)
            s("s_lshl_b32 s38, s38, 2")
            s("s_add_u32 s38, s38, %d" % TRACE_OFF)
            v("v_lshrrev_b32 v%d, 2, %s" % (T, vLane16))
            e.ins("buffer_store_dword v26, v%d, %s, s38 offen" % (T, WS_), r=["v26", "v%d" % T], kind='vmem')
    e.label("L_done")
    s("s_endpgm")
    tail = ['.section .rodata,"a"', ".p2align 6", ".amdhsa_kernel %s" % name,
            "  .amdhsa_next_free_vgpr 256", "  .amdhsa_next_free_sgpr 100", "  .amdhsa_accum_offset 256",
            "  .amdhsa_group_segment_fixed_size 0", "  .amdhsa_kernarg_size 104", "  .amdhsa_user_sgpr_count 2",
            "  .amdhsa_user_sgpr_kernarg_segment_ptr 1", "  .amdhsa_system_sgpr_workgroup_id_x 1", ".end_amdhsa_kernel"]
    return "\n".join(hdr) + "\n" + e.text() + "\n".join(tail) + "\n"

def report(stm):
    import numpy as np
    rows = []
    cons = [g for g in range(256) if (g & 31) < 20]
    for st in stm:
        w0 = st[:, 0, :]; w4 = st[:, 1, :]; t0 = min(w0[:, 0].min(), w4[:, 0].min())
        d = (w0[:, :7] - t0)/100; h = (w4[:, :7] - t0)/100
        rows.append([d[:, 0].max(), np.median(h[:, 1]), h[:, 1].max(), np.median(d[:, 2]), d[:, 2].max(), np.median(h[:, 2]), h[:, 2].max(),
                     np.median(d[:, 3]), d[:, 3].max(), h[:, 4].min(), h[:, 4].mean(), h[:, 4].max(), np.median(h[:, 5]-h[:, 4]), h[:, 5].max(), h[:, 6].max(), d[cons, 5].max(), d[cons, 6].max()])
    r = np.round(np.median(np.array(rows), axis=0), 2)
    print("   lastStart %.2f | qpart med %.2f max %.2f | q-ready med %.2f max %.2f | weights issued med %.2f max %.2f | A done med %.2f max %.2f | B done min %.2f mean %.2f max %.2f | outproj dur %.2f done max %.2f | published max %.2f | poll ok max %.2f | final %.2f" % tuple(r))
    print("   xcd mean done:", [round(float(np.mean([(((s_[(s_[:, 0, 7] & 7) == x, 1, 4]-s_[:, 0, 0].min())/100).mean()) for s_ in stm])), 1) for x in range(8)])
def report_trace(stm, trc):
    import numpy as np
    acc = []
    for st, t in zip(stm, trc):
        t0 = min(st[:, 0, 0].min(), st[:, 1, 0].min())
        x = (t.astype(np.int64) - t0)/100.0
        x[t == 0] = np.nan
        acc.append(x)
    a = np.array(acc)
    for w, nm, sl in ((0, "streamer p0", slice(0, 128)), (0, "streamer p1", slice(128, 256)), (1, "helper", slice(0, 256))):
        m = np.nanmedian(np.nanmean(a[:, sl, w, :], axis=1), axis=0)
        m = m[~np.isnan(m)]
        print("   %s times:" % nm, np.round(m, 2).tolist())
        print("   %s diffs:" % nm, np.round(np.diff(m), 2).tolist())
if __name__ == "__main__":
    cfg = json.loads(sys.argv[2]) if len(sys.argv) > 2 else {}
    open(sys.argv[1], "w").write(gen(**cfg))
```
